```python
import torch

def _softmax(x, axis=-1):
    return torch.softmax(x, dim=axis)
def _gelu(x):
    return torch.nn.functional.gelu(x, approximate="tanh")
def _silu(x):
    return torch.nn.functional.silu(x)
def _sigmoid(x):
    return torch.sigmoid(x)
def _layernorm(x, axis=-1, eps=1e-5):
    m = x.mean(dim=axis, keepdim=True)
    v = x.var(dim=axis, keepdim=True, unbiased=False)
    return (x - m) / torch.sqrt(v + eps)
def _scatter_add(tgt, idx, src, axis=0):
    return tgt.clone().index_add_(axis, idx, src)
def _segment_sum(src, seg, n):
    out = torch.zeros((n,) + src.shape[1:], dtype=src.dtype)
    return out.index_add_(0, seg, src)
def _pad(x, pw):
    flat = tuple(v for pair in reversed(pw) for v in pair)
    return torch.nn.functional.pad(x, flat)

kernel_name = 'sequential_preLN__mha_block_cached__glu_gated_reglu__decode'

def setup_inputs():

    _w = (lambda a: (lambda t: t.to(torch.bfloat16) if t.is_floating_point() else t)(torch.as_tensor(a)))
    def _A_setup():
        B, Sq, D = 1, 1, 640
        H, Sk, Dh = 32, 8192, 192
        return {
            "x": _w((lambda *s: torch.randn(*s, dtype=torch.bfloat16) * 0.05)(B, Sq, D)),
            "k_cache": _w((lambda *s: torch.randn(*s, dtype=torch.bfloat16) * 1.6)(B, H, Sk, Dh)),
            "v_cache": _w((lambda *s: torch.randn(*s, dtype=torch.bfloat16) * 0.8)(B, H, Sk, Dh)),
            "wq": _w((lambda *s: torch.randn(*s, dtype=torch.bfloat16) * 1.6)(D, H * Dh) * (D ** -0.5)),
            "wo": _w((lambda *s: torch.randn(*s, dtype=torch.bfloat16) * 0.8)(H * Dh, D) * ((H * Dh) ** -0.5)),
        }
    _A_in = _A_setup()

    def _B_setup():
        B, S, D, F = 1, 1, 640, 1536
        return {
            "x": _w((lambda *s: torch.randn(*s, dtype=torch.bfloat16) * 0.05)(B, S, D)),
            "W_gate": _w((lambda *s: torch.randn(*s, dtype=torch.bfloat16) * 0.4)(D, F) * (2.0 / D) ** 0.5),
            "W_up": _w((lambda *s: torch.randn(*s, dtype=torch.bfloat16) * 0.4)(D, F) * (2.0 / D) ** 0.5),
            "W_down": _w((lambda *s: torch.randn(*s, dtype=torch.bfloat16) * 0.4)(F, D) * (1.0 / F) ** 0.5),
        }
    _B_in = _B_setup()

    return {
        "A_x": _A_in["x"],
        "A_k_cache": _A_in["k_cache"],
        "A_v_cache": _A_in["v_cache"],
        "A_wq": _A_in["wq"],
        "A_wo": _A_in["wo"],
        "B_x": _B_in["x"],
        "B_W_gate": _B_in["W_gate"],
        "B_W_up": _B_in["W_up"],
        "B_W_down": _B_in["W_down"],
    }

def reference(A_x, A_k_cache, A_v_cache, A_wq, A_wo, B_x, B_W_gate, B_W_up, B_W_down):
    def _A_ref(x, k_cache, v_cache, wq, wo):
        B, Sq, D = x.shape
        H, Dh = 32, 192
        q = (lambda x, *d: x.permute(*d))((x @ wq).reshape(B, Sq, H, Dh), 0, 2, 1, 3)
        scores = torch.einsum("bhqd,bhkd->bhqk", q, k_cache) * (Dh ** -0.5)
        p = _softmax(scores, axis=-1)
        o = torch.einsum("bhqk,bhkd->bhqd", p, v_cache)
        return (lambda x, *d: x.permute(*d))(o, 0, 2, 1, 3).reshape(B, Sq, H * Dh) @ wo

    def _B_ref(x, W_gate, W_up, W_down):
        gate = torch.einsum("bsd,df->bsf", x, W_gate)
        up = torch.einsum("bsd,df->bsf", x, W_up)
        gate = gate * (lambda x, dt: x.to(dt))(gate > 0, gate.dtype)
        h = gate * up
        return torch.einsum("bsf,fd->bsd", h, W_down)

    x = A_x
    h = x + _A_ref(_layernorm(x, axis=-1), A_k_cache, A_v_cache, A_wq, A_wo)
    h2 = h + _B_ref(_layernorm(h, axis=-1), B_W_gate, B_W_up, B_W_down)
    return h2
```

```python
import sys

NAME = "sequential_preLN__mha_block_cached__glu_gated_reglu__decode"

HEADER = """; Kernarg layout for this problem (96 bytes, ptrs only, base s[0:1]):
"""

QP = 0x000000
OP = 0x040000
YP = 0x060000
ZP = 0x070000
EP = 0x0B0000
ST = 0x100000
WS_SPAN = 0x200000
L_Q = 0x0000
L_PROG = 0x0200
L_DONE = 0x0204
L_O = 0x0400
L_H = 0x1400
L_RED = 0x1900
L_CS = 0x1C00
L_DUM = 0x1E00
L_W = 0x2000
LDS_BYTES = 0x2000 + 49152

FULL = "row_mask:0xf bank_mask:0xf"
LOG2E = 0x3FB8AA3B
SCALE = 0x3D93CD3A
TAGK = 0x9E3779B9
SPIN = 1 << 17


class G:
    def __init__(self, diag=False, P=6, trig=0, pace=9, warm=False, prio=0):
        self.L = []
        self.diag = diag
        self.P = P
        self.trig = trig
        self.pace = pace
        self.warm = warm
        self.prio = prio
        self.nst = 0

    def __call__(self, s):
        for ln in s.strip("\n").split("\n"):
            ln = ln.strip()
            if not ln:
                continue
            self.L.append(ln if ln.endswith(":") else "  " + ln)

    def stamp(self, i):
        if self.diag:
            self(f"s_memrealtime s[{70+2*i}:{71+2*i}]")

    def stamps_out(self, n, tmpv=2):
        if not self.diag:
            return
        a = self
        a("s_mov_b64 exec, -1")
        a("s_waitcnt lgkmcnt(0)")
        a(f"v_mov_b32 v{tmpv}, 0")
        for i in range(n):
            a(f"v_writelane_b32 v{tmpv}, s{70+2*i}, {i}")
        a("s_getreg_b32 s68, hwreg(HW_REG_XCC_ID)")
        a(f"v_writelane_b32 v{tmpv}, s68, 15")
        a("s_lshl_b32 s68, s2, 3")
        a("s_add_u32 s68, s68, s3")
        a("s_lshl_b32 s68, s68, 6")
        a(f"s_add_u32 s68, s68, {ST}")
        a(f"v_lshlrev_b32 v{tmpv+1}, 2, v0")
        a("s_mov_b64 exec, 0xffff")
        a(f"buffer_store_dword v{tmpv}, v{tmpv+1}, s[48:51], s68 offen")

    def srd(self, d, lo, nbytes, off=None):
        a = self
        if off is None:
            a(f"s_mov_b32 s{d}, s{lo}")
            a(f"s_mov_b32 s{d+1}, s{lo+1}")
        else:
            a(f"s_add_u32 s{d}, s{lo}, {off}")
            a(f"s_addc_u32 s{d+1}, s{lo+1}, 0")
        a(f"s_mov_b32 s{d+2}, {nbytes}")
        a(f"s_mov_b32 s{d+3}, 0x20000")

    def wave_reduce(self, op, regs):
        a = self
        steps = [f"quad_perm:[1,0,3,2] {FULL}", f"quad_perm:[2,3,0,1] {FULL}", f"row_half_mirror {FULL}",
                 f"row_mirror {FULL}", "row_bcast:15 row_mask:0xa bank_mask:0xf", "row_bcast:31 row_mask:0xc bank_mask:0xf"]
        pad = max(0, 2 - (len(regs) - 1))
        a("s_nop 1")
        for si, st in enumerate(steps):
            for r in regs:
                a(f"{op}_dpp v{r}, v{r}, v{r} {st}")
            if pad and si < len(steps) - 1:
                a(f"s_nop {pad-1}")

    def reduce_scatter24(self, acc):
        a = self
        a("s_nop 2")
        for i in range(3):
            for j in range(4):
                a(f"v_permlane32_swap_b32 v{acc+8*i+j}, v{acc+8*i+j+4}")
        for i in range(3):
            for j in range(4):
                a(f"v_add_f32 v{acc+8*i+j}, v{acc+8*i+j}, v{acc+8*i+j+4}")
        for i in range(3):
            for j in range(2):
                a(f"v_permlane16_swap_b32 v{acc+8*i+j}, v{acc+8*i+j+2}")
        for i in range(3):
            for j in range(2):
                a(f"v_add_f32 v{acc+8*i+j}, v{acc+8*i+j}, v{acc+8*i+j+2}")
        for i in range(3):
            a(f"v_add_f32_dpp v{acc+8*i+2}, v{acc+8*i}, v{acc+8*i} row_ror:8 row_mask:0xf bank_mask:0x3")
        for i in range(3):
            a(f"v_add_f32_dpp v{acc+8*i+2}, v{acc+8*i+1}, v{acc+8*i+1} row_ror:8 row_mask:0xf bank_mask:0xc")
        return [acc + 2, acc + 10, acc + 18]

    def colperm(self, d, t):
        a = self
        a(f"v_and_b32 v{d}, 7, v0")
        a(f"v_lshlrev_b32 v{d}, 3, v{d}")
        a(f"v_bfe_u32 v{t}, v0, 3, 3")
        a(f"v_add_u32 v{d}, v{d}, v{t}")

    def spin_guard(self, sreg, label):
        self(f"s_sub_u32 s{sreg}, s{sreg}, 1")
        self(f"s_cbranch_scc1 {label}")

    def gen(self):
        a = self
        P = self.P
        a(f"{NAME}_kernel:")
        a("s_cmp_ge_u32 s2, 256")
        a("s_cbranch_scc1 L_end")
        a("s_load_dwordx16 s[16:31], s[0:1], 0")
        a("s_load_dwordx8 s[32:39], s[0:1], 64")
        a.stamp(0)
        a("v_lshrrev_b32 v1, 6, v0")
        a("v_and_b32 v0, 63, v0")
        a("v_readfirstlane_b32 s3, v1")
        a("s_mul_i32 s4, s2, 393216")
        a("v_lshrrev_b32 v1, 3, v0")
        a("v_and_b32 v2, 7, v0")
        a("s_cmp_ge_u32 s3, 4")
        a("s_cbranch_scc1 L_service")
        self.stream()
        self.service()
        a("L_end:")
        a("s_endpgm")

    def stream(self):
        a = self
        P = self.P
        Q, ACC, VL, T = 2, 14, 38, 40
        RING, PARK = 48, 96
        a("v_mul_u32_u24 v1, 384, v1")
        a("v_lshl_add_u32 v1, v2, 4, v1")
        a("s_mul_i32 s52, s3, 3072")
        a("s_waitcnt lgkmcnt(0)")
        a.srd(40, 18, 393216, "s4")
        a.srd(44, 20, 393216, "s4")

        def issue(srd, r):
            for i in range(3):
                a(f"buffer_load_dwordx4 v[{r+4*i}:{r+4*i+3}], v1, s[{srd}:{srd+3}], s52 offen offset:{128*i} nt")

        n = 0
        for t in range(P + 2):
            base = PARK + 24 * t if t < P else RING + 24 * (t - P)
            for kv in range(2):
                if n * 3 > self.pace:
                    a(f"s_waitcnt vmcnt({self.pace})")
                issue(40 + 4 * kv, base + 12 * kv)
                n += 1
                if n == 2:
                    a.srd(48, 38, WS_SPAN)
                    for i in range(24):
                        a(f"v_mov_b32 v{ACC+i}, 0")
                    a(f"v_mov_b32 v{VL}, 0")
                    a("s_mov_b32 s54, 0xff7fffff")
                    a(f"s_mov_b32 s55, {SCALE}")
                    a(f"s_mov_b32 s56, {LOG2E}")
                    a("v_lshlrev_b32 v44, 4, v2")
                    a(f"v_mov_b32 v45, {L_PROG}")
                    a("v_mov_b32 v46, 1")
                    a("s_getpc_b64 s[58:59]")
                    a("L_pc0:")
                    a("s_add_u32 s58, s58, L_rescale-L_pc0")
                    a("s_addc_u32 s59, s59, 0")
            a("s_add_u32 s52, s52, 12288")
        a.stamp(1)
        a("s_barrier")
        for i in range(3):
            a(f"ds_read_b128 v[{Q+4*i}:{Q+4*i+3}], v44 offset:{L_Q+128*i}")
        a.stamp(2)
        a("s_waitcnt lgkmcnt(0)")

        cnt = [0]

        def scores(r, reissue):
            a(f"v_mov_b32 v{T}, 0")
            for i in range(12):
                a(f"v_dot2c_f32_bf16 v{T}, v{r+i}, v{Q+i}")
            if reissue:
                issue(40, r)
            else:
                a("s_nop 2")
            a(f"v_add_f32_dpp v{T}, v{T}, v{T} quad_perm:[1,0,3,2] {FULL}")
            a("s_nop 1")
            a(f"v_add_f32_dpp v{T}, v{T}, v{T} quad_perm:[2,3,0,1] {FULL}")
            a("s_nop 1")
            a(f"v_add_f32_dpp v{T}, v{T}, v{T} row_half_mirror {FULL}")
            a(f"v_cvt_pk_bf16_f32 v{T}, 0, v{T}")
            a(f"v_mul_f32 v{T}, s55, v{T}")
            a(f"v_cvt_pk_bf16_f32 v{T}, 0, v{T}")
            a(f"v_mul_f32 v{T}, s56, v{T}")
            a(f"v_cmp_lt_f32 vcc, s54, v{T}")
            cnt[0] += 1
            a(f"s_cbranch_vccz L_nr{cnt[0]}")
            a("s_swappc_b64 s[60:61], s[58:59]")
            a(f"L_nr{cnt[0]}:")
            a(f"v_subrev_f32 v{T}, s54, v{T}")
            a(f"v_exp_f32 v{T}, v{T}")
            a("s_nop 0")
            a(f"v_add_f32 v{VL}, v{VL}, v{T}")
            a(f"v_cvt_pk_bf16_f32 v{T+1}, v{T}, 0")
            a(f"v_cvt_pk_bf16_f32 v{T+2}, 0, v{T}")

        def accum(r, reissue):
            for i in range(12):
                a(f"v_dot2c_f32_bf16 v{ACC+2*i}, v{r+i}, v{T+1}")
                a(f"v_dot2c_f32_bf16 v{ACC+2*i+1}, v{r+i}, v{T+2}")
            if reissue:
                issue(44, r)
                a("s_add_u32 s52, s52, 12288")
                a("s_min_u32 s52, s52, 393216")

        if self.pace > 9:
            a("s_waitcnt vmcnt(12)")
        for t in range(P):
            scores(PARK + 24 * t, False)
            accum(PARK + 24 * t + 12, False)
        a.stamp(3)
        assert (32 - P) % 2 == 0
        a(f"s_mov_b32 s53, {(32-P)//2}")
        a(".p2align 3")
        a("L_loop:")
        for t in range(2):
            a("s_waitcnt vmcnt(9)")
            scores(RING + 24 * t, True)
            a("s_waitcnt vmcnt(9)")
            accum(RING + 24 * t + 12, True)
        a("s_mov_b64 exec, 1")
        a("ds_add_u32 v45, v46")
        a("s_mov_b64 exec, -1")
        a("s_sub_u32 s53, s53, 1")
        a("s_cmp_lg_u32 s53, 0")
        a("s_cbranch_scc1 L_loop")
        a.stamp(4)
        res = a.reduce_scatter24(ACC)
        a(f"v_add_f32_dpp v{VL}, v{VL}, v{VL} row_ror:8 {FULL}")
        a.colperm(T, T + 1)
        a(f"v_add_f32_dpp v{VL}, v{VL}, v{VL} row_bcast:15 row_mask:0xa bank_mask:0xf")
        a("s_lshl_b32 s5, s3, 10")
        a(f"v_lshl_add_u32 v{T}, v{T}, 2, s5")
        a(f"v_add_f32_dpp v{VL}, v{VL}, v{VL} row_bcast:31 row_mask:0xc bank_mask:0xf")
        a(f"v_mov_b32 v{VL+1}, s54")
        for i in range(3):
            a(f"ds_write_b32 v{T}, v{res[i]} offset:{L_O+256*i}")
        a(f"v_mov_b32 v{T+1}, s5")
        a("s_mov_b32 exec_lo, 0")
        a("s_mov_b32 exec_hi, 0x80000000")
        a(f"ds_write_b64 v{T+1}, v[{VL}:{VL+1}] offset:{L_O+768}")
        a(f"ds_add_rtn_u32 v47, v45, v46 offset:{L_DONE-L_PROG}")
        a("s_mov_b64 exec, -1")
        a(f"v_lshlrev_b32 v{T}, 4, v0")
        a(f"v_mov_b32 v{T+1}, 0")
        a("s_waitcnt lgkmcnt(0)")
        a("v_readlane_b32 s5, v47, 63")
        a("s_lshl_b32 s6, s2, 9")
        a(f"s_add_u32 s6, s6, {OP}")
        a("s_cmp_lg_u32 s5, 3")
        a("s_cbranch_scc1 L_sdone")
        E = 96
        for w in range(4):
            a(f"ds_read_b64 v[{E+2*w}:{E+1+2*w}], v{T+1} offset:{L_O+768+1024*w}")
        for w in range(4):
            a(f"ds_read_b128 v[{E+8+4*w}:{E+11+4*w}], v{T} offset:{L_O+1024*w}")
        a(f"v_lshlrev_b32 v{T+2}, 3, v0")
        a("s_waitcnt lgkmcnt(4)")
        a(f"v_max3_f32 v{E+25}, v{E+1}, v{E+3}, v{E+5}")
        a(f"v_max_f32 v{E+25}, v{E+25}, v{E+7}")
        for w in range(4):
            a(f"v_sub_f32 v{E+1+2*w}, v{E+1+2*w}, v{E+25}")
        for w in range(4):
            a(f"v_exp_f32 v{E+1+2*w}, v{E+1+2*w}")
        a(f"v_mul_f32 v{E+24}, v{E}, v{E+1}")
        for w in range(1, 4):
            a(f"v_fmac_f32 v{E+24}, v{E+2*w}, v{E+1+2*w}")
        a("s_waitcnt lgkmcnt(0)")
        for j in range(4):
            a(f"v_mul_f32 v{E+8+j}, v{E+8+j}, v{E+1}")
        for w in range(1, 4):
            for j in range(4):
                a(f"v_fmac_f32 v{E+8+j}, v{E+8+4*w+j}, v{E+1+2*w}")
        a("s_mov_b32 exec_hi, 0xffff")
        a(f"v_cvt_pk_bf16_f32 v{E+24}, v{E+8}, v{E+9}")
        a(f"v_cvt_pk_bf16_f32 v{E+25}, v{E+10}, v{E+11}")
        a("s_mov_b32 exec_hi, 0x1ffff")
        a(f"buffer_store_dwordx2 v[{E+24}:{E+25}], v{T+2}, s[48:51], s6 offen sc1")
        a("L_sdone:")
        a.stamp(5)
        a.stamps_out(6)
        a("s_endpgm")
        a("L_rescale:")
        a(f"v_mov_b32 v{T+1}, v{T}")
        a(f"v_mov_b32 v{T+2}, s54")
        a("s_nop 0")
        a(f"v_max_f32_dpp v{T+1}, v{T+1}, v{T+1} row_ror:8 {FULL}")
        a("s_nop 1")
        a(f"v_max_f32_dpp v{T+1}, v{T+1}, v{T+1} row_bcast:15 row_mask:0xa bank_mask:0xf")
        a("s_nop 1")
        a(f"v_max_f32_dpp v{T+1}, v{T+1}, v{T+1} row_bcast:31 row_mask:0xc bank_mask:0xf")
        a("s_nop 0")
        a(f"v_readlane_b32 s54, v{T+1}, 63")
        a("s_nop 1")
        a(f"v_subrev_f32 v{T+2}, s54, v{T+2}")
        a(f"v_exp_f32 v{T+2}, v{T+2}")
        a("s_nop 0")
        for i in range(25):
            a(f"v_mul_f32 v{ACC+i}, v{ACC+i}, v{T+2}")
        a("s_setpc_b64 s[60:61]")

    def service(self):
        a = self
        a("L_service:")
        if self.prio:
            a(f"s_setprio {self.prio}")
        a("s_sub_u32 s4, s3, 4")
        a("s_waitcnt lgkmcnt(0)")
        a.srd(48, 38, WS_SPAN)
        a.srd(40, 16, 1280)
        a(f"s_load_dword s14, s[38:39], {EP}")
        a("s_and_b32 s5, s2, 7")
        a("s_lshr_b32 s6, s2, 3")
        a("s_mul_i32 s7, s5, 20")
        a("s_add_u32 s7, s7, s6")
        a("s_mul_i32 s8, s7, 6554")
        a("s_lshr_b32 s8, s8, 16")
        a("s_mul_i32 s9, s8, 10")
        a("s_sub_u32 s9, s7, s9")
        a("s_mul_i32 s10, s5, 12")
        a("s_add_u32 s10, s10, s6")
        a("s_sub_u32 s10, s10, 20")
        a(f"s_mov_b32 s57, {SPIN}")
        a("s_cmp_eq_u32 s4, 0")
        a("s_cbranch_scc1 L_qphase")
        a("s_cmp_eq_u32 s4, 1")
        a("s_cbranch_scc0 L_b1")
        for i in range(4):
            a(f"v_mov_b32 v{4+i}, -1")
        a("v_lshlrev_b32 v3, 4, v0")
        a("s_lshl_b32 s11, s2, 9")
        a(f"s_add_u32 s11, s11, {OP}")
        a("s_mov_b32 exec_hi, 0")
        a("buffer_store_dwordx4 v[4:7], v3, s[48:51], s11 offen sc1")
        a("s_cmp_ge_u32 s2, 160")
        a("s_cbranch_scc1 L_clrz")
        a("s_mul_i32 s11, s8, 2560")
        a("s_lshl_b32 s12, s9, 8")
        a("s_add_u32 s11, s11, s12")
        a(f"s_add_u32 s11, s11, {YP}")
        a("s_mov_b64 exec, 0xffff")
        a("buffer_store_dwordx4 v[4:7], v3, s[48:51], s11 offen sc1")
        a("s_branch L_clrd")
        a("L_clrz:")
        a("s_mul_i32 s11, s10, 2560")
        a(f"s_add_u32 s11, s11, {ZP}")
        a("buffer_store_dwordx4 v[4:7], v3, s[48:51], s11 offen offset:2048 sc1")
        a("s_mov_b64 exec, -1")
        a("buffer_store_dwordx4 v[4:7], v3, s[48:51], s11 offen sc1")
        a("buffer_store_dwordx4 v[4:7], v3, s[48:51], s11 offen offset:1024 sc1")
        a("L_clrd:")
        a("s_mov_b64 exec, 1")
        a("v_mov_b32 v8, 0")
        a("v_mov_b32 v9, 1")
        a("s_waitcnt vmcnt(0)")
        a("global_atomic_add v8, v9, s[36:37]")
        a("s_mov_b64 exec, -1")
        a("s_branch L_b1")

        a("L_qphase:")
        W0, ACC = 64, 32
        a("s_mul_i32 s11, s5, 983040")
        a("s_mul_i32 s12, s6, 384")
        a("s_add_u32 s11, s11, s12")
        a.srd(44, 22, 79 * 12288 + 384, "s11")
        a("v_lshlrev_b32 v3, 2, v0")
        for i in range(5):
            a(f"buffer_load_dword v{4+i}, v3, s[40:43], 0 offen offset:{256*i}")
        a("v_mul_u32_u24 v3, 20, v1")
        a("s_mul_i32 s12, s5, 160")
        a("buffer_load_dwordx4 v[12:15], v3, s[40:43], s12 offen")
        a("buffer_load_dword v16, v3, s[40:43], s12 offen offset:16")
        a("s_mov_b32 s13, 122880")
        a("v_mul_lo_u32 v3, v1, s13")
        a("v_lshl_add_u32 v3, v2, 4, v3")
        a("s_mov_b32 s12, 0")
        for g in range(10):
            for i in range(3):
                r = W0 + 12 * g + 4 * i
                a(f"buffer_load_dwordx4 v[{r}:{r+3}], v3, s[44:47], s12 offen offset:{128*i} nt")
            if g < 9:
                a("s_add_u32 s12, s12, 12288")
        a("v_mov_b32 v18, 0")
        a("v_mov_b32 v19, 0")
        a(f"ds_write_b64 v18, v[18:19] offset:{L_PROG}")
        for i in range(24):
            a(f"v_mov_b32 v{ACC+i}, 0")
        a("s_waitcnt vmcnt(32)")
        for i in range(5):
            a(f"v_lshlrev_b32 v{20+2*i}, 16, v{4+i}")
            a(f"v_and_b32 v{21+2*i}, 0xffff0000, v{4+i}")
        a("v_add_f32 v4, v20, v21")
        for i in range(2, 10):
            a(f"v_add_f32 v4, v4, v{20+i}")
        a.wave_reduce("v_add_f32", [4])
        a("s_nop 0")
        a("v_readlane_b32 s12, v4, 63")
        a("v_mov_b32 v5, 0x3acccccd")
        a("s_nop 0")
        a("v_mul_f32 v5, s12, v5")
        a("v_mov_b32 v4, 0")
        for i in range(10):
            a(f"v_sub_f32 v6, v{20+i}, v5")
            a("v_fmac_f32 v4, v6, v6")
        a.wave_reduce("v_add_f32", [4])
        a("s_nop 0")
        a("v_readlane_b32 s12, v4, 63")
        a("v_mov_b32 v6, 0x3acccccd")
        a("v_cvt_pk_bf16_f32 v5, 0, v5")
        a("v_mul_f32 v6, s12, v6")
        a("v_cvt_pk_bf16_f32 v6, 0, v6")
        a("v_add_f32 v6, 0x3727c5ac, v6")
        a("v_cvt_pk_bf16_f32 v6, 0, v6")
        a("v_sqrt_f32 v6, v6")
        a("s_nop 0")
        a("v_cvt_pk_bf16_f32 v6, 0, v6")
        a("v_rcp_f32 v7, v6")
        a("s_waitcnt vmcnt(30)")
        for i in range(5):
            a(f"v_lshlrev_b32 v{20+2*i}, 16, v{12+i}")
            a(f"v_and_b32 v{21+2*i}, 0xffff0000, v{12+i}")
        for g in range(10):
            a(f"v_sub_f32 v8, v{20+g}, v5")
            a("v_cvt_pk_bf16_f32 v8, 0, v8")
            a("v_mul_f32 v9, v8, v7")
            a("v_fma_f32 v10, -v9, v6, v8")
            a("v_fmac_f32 v9, v10, v7")
            a("v_cvt_pk_bf16_f32 v10, v9, 0")
            a("v_cvt_pk_bf16_f32 v11, 0, v9")
            a(f"s_waitcnt vmcnt({27-3*g})")
            for i in range(12):
                a(f"v_dot2c_f32_bf16 v{ACC+2*i}, v{W0+12*g+i}, v10")
                a(f"v_dot2c_f32_bf16 v{ACC+2*i+1}, v{W0+12*g+i}, v11")
        a.stamp(1)
        res = a.reduce_scatter24(ACC)
        a("s_waitcnt lgkmcnt(0)")
        a(f"s_add_u32 s14, s14, {TAGK}")
        for i in range(3):
            a(f"v_mov_b32 v{4+i}, v{res[i]}")
        a("v_mov_b32 v7, s14")
        a("v_lshlrev_b32 v3, 4, v0")
        a("s_lshl_b32 s11, s2, 10")
        a("buffer_store_dwordx4 v[4:7], v3, s[48:51], s11 offen sc1")
        a("s_lshl_b32 s11, s6, 13")
        a("s_add_u32 s12, s11, 4096")
        a.colperm(8, 9)
        a("v_lshlrev_b32 v8, 1, v8")
        a("L_qpoll:")
        for p in range(8):
            a(f"buffer_load_dwordx4 v[{64+4*p}:{67+4*p}], v3, s[48:51], s{11+p//4} offen offset:{1024*(p%4)} sc1")
        a.spin_guard(57, "L_qgot")
        a("s_waitcnt vmcnt(0)")
        a("v_xor_b32 v9, s14, v67")
        for p in range(1, 8):
            a(f"v_xor_b32 v10, s14, v{67+4*p}")
            a("v_or_b32 v9, v9, v10")
        a("v_cmp_ne_u32 vcc, 0, v9")
        a("s_cbranch_vccnz L_qpoll")
        a("L_qgot:")
        a("s_waitcnt vmcnt(0)")
        for i in range(3):
            for p in range(1, 8):
                a(f"v_add_f32 v{64+i}, v{64+i}, v{64+4*p+i}")
            a(f"v_cvt_pk_bf16_f32 v{64+i}, v{64+i}, 0")
            a(f"ds_write_b16 v8, v{64+i} offset:{L_Q+128*i}")
        a.stamp(2)
        a("s_waitcnt lgkmcnt(0)")
        a("s_branch L_b1x")

        a("L_b1:")
        a("s_waitcnt lgkmcnt(0)")
        a(f"s_add_u32 s14, s14, {TAGK}")
        a("L_b1x:")
        a("s_barrier")
        a("v_mov_b32 v8, 0")
        a("L_chk:")
        a("global_load_dword v9, v8, s[36:37] sc1")
        a.spin_guard(57, "L_chkd")
        a("s_waitcnt vmcnt(0)")
        a("v_cmp_gt_u32 vcc, 0x100, v9")
        a("s_cbranch_vccz L_chkd")
        a("s_sleep 16")
        a("s_branch L_chk")
        a("L_chkd:")
        a(f"s_mov_b32 s57, {SPIN}")
        a.stamp(3)
        if self.trig > 0:
            a("L_trig:")
            a(f"ds_read_b32 v9, v8 offset:{L_PROG}")
            a.spin_guard(57, "L_trigd")
            a("s_waitcnt lgkmcnt(0)")
            a(f"v_cmp_gt_u32 vcc, {self.trig}, v9")
            a("s_cbranch_vccz L_trigd")
            a("s_sleep 4")
            a("s_branch L_trig")
            a("L_trigd:")
            a("s_waitcnt lgkmcnt(0)")
            a(f"s_mov_b32 s57, {SPIN}")
        a("s_waitcnt vmcnt(0)")
        a("s_cmp_ge_u32 s2, 160")
        a("s_cbranch_scc1 L_ffn")
        self.wo()
        self.ffn()

    def wo(self):
        a = self
        a("s_mul_i32 s11, s8, 491520")
        a("s_lshl_b32 s12, s9, 7")
        a("s_add_u32 s11, s11, s12")
        a.srd(44, 24, 383 * 1280 + 128, "s11")
        a("v_mul_u32_u24 v3, 1280, v1")
        a("v_bfe_u32 v4, v0, 4, 1")
        a("v_lshlrev_b32 v4, 1, v4")
        a("v_xor_b32 v4, v4, v2")
        a("v_xor_b32 v5, 4, v4")
        a("v_lshl_add_u32 v4, v4, 4, v3")
        a("v_lshl_add_u32 v5, v5, 4, v3")
        a("s_mul_i32 s12, s4, 122880")
        a("s_mul_i32 s13, s4, 12288")
        a(f"s_add_u32 s13, s13, {L_W}")
        for i in range(12):
            a("s_mov_b32 m0, s13")
            a("s_add_u32 s13, s13, 1024")
            a(f"buffer_load_dwordx4 v{4+((i>>1)&1)}, s[44:47], s12 offen nt lds")
            a("s_add_u32 s12, s12, 10240")
        a.stamp(4)
        a("s_waitcnt vmcnt(0)")
        a.stamp(5)
        a("s_barrier")
        a("s_cmp_ge_u32 s4, 2")
        a("s_cbranch_scc1 L_fin")
        B0 = 64
        a("v_lshrrev_b32 v3, 4, v0")
        a("v_bfe_u32 v4, v0, 2, 2")
        a("v_lshl_add_u32 v5, v3, 4, v4")
        a("v_lshlrev_b32 v5, 7, v5")
        a("v_and_b32 v6, 3, v0")
        a("v_lshl_add_u32 v5, v6, 3, v5")
        a("v_bfe_u32 v6, v0, 3, 2")
        a("s_lshl_b32 s12, s4, 1")
        a("v_xor_b32 v6, s12, v6")
        a("v_xor_b32 v7, 1, v6")
        a("v_lshl_add_u32 v6, v6, 5, v5")
        a("v_lshl_add_u32 v7, v7, 5, v5")
        for hj in range(6):
            for tb in range(2):
                for blk in range(2):
                    for half in range(2):
                        r = B0 + 4 * ((hj * 2 + tb) * 2 + blk) + 2 * half
                        row = 64 * hj + 8 * tb + 4 * half
                        a(f"ds_read_b64_tr_b16 v[{r}:{r+1}], v{6+blk} offset:{L_W+row*128}")
        a("v_bfe_u32 v8, v0, 1, 3")
        a("v_lshlrev_b32 v8, 9, v8")
        a("v_lshl_add_u32 v8, v3, 5, v8")
        a("v_and_b32 v9, 1, v0")
        a("v_lshl_add_u32 v8, v9, 4, v8")
        a("v_lshlrev_b32 v9, 1, v3")
        a("v_xor_b32 v9, v9, v0")
        a("v_and_b32 v9, 15, v9")
        a("v_lshlrev_b32 v9, 9, v9")
        a("s_lshl_b32 s11, s8, 13")
        a(f"s_add_u32 s11, s11, {OP}")
        a("s_add_u32 s12, s11, 4096")
        a("s_mul_i32 s13, s8, 2560")
        a("s_lshl_b32 s15, s9, 8")
        a("s_add_u32 s13, s13, s15")
        a("s_lshl_b32 s15, s4, 7")
        a("s_add_u32 s13, s13, s15")
        a(f"s_add_u32 s13, s13, {YP}")
        a("v_lshlrev_b32 v10, 2, v0")
        a("s_waitcnt lgkmcnt(0)")
        a.stamp(6)
        A0, D0 = 16, 160
        a("L_opoll:")
        a("buffer_load_dwordx2 v[12:13], v9, s[48:51], s11 offen offset:384 sc1")
        for hj in range(6):
            a(f"buffer_load_dwordx4 v[{A0+4*hj}:{A0+4*hj+3}], v8, s[48:51], s{11+hj//3} offen offset:{128*(hj%3)} sc1")
        a.spin_guard(57, "L_ogo")
        a("s_waitcnt vmcnt(6)")
        a("v_cmp_u_f32 vcc, v12, v13")
        a("s_cbranch_vccnz L_opoll")
        a("L_ogo:")
        a.stamp(7)
        wsteps = [
            ["s_waitcnt vmcnt(6)", "v_mov_b32 v14, v13"],
            [f"v_max_f32_dpp v14, v14, v14 quad_perm:[1,0,3,2] {FULL}"],
            [f"v_max_f32_dpp v14, v14, v14 quad_perm:[2,3,0,1] {FULL}"],
            [f"v_max_f32_dpp v14, v14, v14 row_half_mirror {FULL}", "v_sub_f32 v13, v13, v14", "v_exp_f32 v13, v13"],
            ["v_mul_f32 v12, v12, v13"],
            [f"v_add_f32_dpp v12, v12, v12 quad_perm:[1,0,3,2] {FULL}"],
            [f"v_add_f32_dpp v12, v12, v12 quad_perm:[2,3,0,1] {FULL}"],
            [f"v_add_f32_dpp v12, v12, v12 row_half_mirror {FULL}", "v_rcp_f32 v12, v12"],
            ["v_mul_f32 v13, v13, v12"],
        ]
        k = 0
        for s in wsteps[0]:
            a(s)
        wi = 1
        for hj in range(6):
            hd, j = divmod(hj, 3)
            a(f"s_waitcnt vmcnt({5-hj})")
            for tb in range(2):
                for blk in range(2):
                    d = D0 + 4 * ((hd * 2 + tb) * 2 + blk)
                    b = B0 + 4 * ((hj * 2 + tb) * 2 + blk)
                    c = "0" if j == 0 else f"v[{d}:{d+3}]"
                    a(f"v_mfma_f32_16x16x32_bf16 v[{d}:{d+3}], v[{A0+4*hj}:{A0+4*hj+3}], v[{b}:{b+3}], {c}")
                    k += 1
                    if k % 2 == 0 and wi < len(wsteps):
                        for s in wsteps[wi]:
                            a(s)
                        wi += 1
        assert wi == len(wsteps)

        def dreg(hd, tb, blk):
            return D0 + 4 * ((hd * 2 + tb) * 2 + blk)
        for blk in range(2):
            a(f"v_add_f32 v{40+blk}, v{dreg(0,0,blk)}, v{dreg(0,1,blk)+1}")
        for blk in range(2):
            a(f"v_add_f32 v{42+blk}, v{dreg(0,0,blk)+2}, v{dreg(0,1,blk)+3}")
        for blk in range(2):
            a(f"v_mul_f32_dpp v{40+blk}, v13, v{40+blk} row_newbcast:0 {FULL}")
        for blk in range(2):
            a(f"v_mul_f32_dpp v{42+blk}, v13, v{42+blk} row_newbcast:1 {FULL}")
        for blk in range(2):
            a(f"v_add_f32 v{44+blk}, v{dreg(1,0,blk)}, v{dreg(1,1,blk)+1}")
        for blk in range(2):
            a(f"v_add_f32 v{46+blk}, v{dreg(1,0,blk)+2}, v{dreg(1,1,blk)+3}")
        for blk in range(2):
            a(f"v_fmac_f32_dpp v{40+blk}, v13, v{44+blk} row_newbcast:8 {FULL}")
        for blk in range(2):
            a(f"v_fmac_f32_dpp v{42+blk}, v13, v{46+blk} row_newbcast:9 {FULL}")
        a("v_pk_add_f32 v[40:41], v[40:41], v[42:43]")
        a("s_nop 1")
        a("v_permlane16_swap_b32 v40, v41")
        a("v_add_f32 v40, v40, v41")
        a("v_mov_b32 v41, v40")
        a("s_nop 1")
        a("v_permlane32_swap_b32 v40, v41")
        a("v_add_f32 v40, v40, v41")
        a("v_cmp_u_f32 vcc, v40, v40")
        a("s_cbranch_vccz L_ost")
        a("s_cmp_lt_i32 s57, 0")
        a("s_cbranch_scc0 L_opoll")
        a("L_ost:")
        a("s_mov_b32 exec_hi, 0")
        a("buffer_store_dword v40, v10, s[48:51], s13 offen sc1")
        a.stamp(8)
        a.stamps_out(9)
        a("s_endpgm")

        a("L_fin:")
        a("s_cmp_eq_u32 s4, 2")
        a("s_cbranch_scc0 L_end")
        a("s_cmp_ge_u32 s2, 40")
        a("s_cbranch_scc1 L_end")
        a.srd(44, 34, 1280)
        a("v_lshrrev_b32 v3, 2, v0")
        a("v_mul_u32_u24 v3, 2560, v3")
        a("v_and_b32 v4, 3, v0")
        a("v_lshl_add_u32 v3, v4, 4, v3")
        a("v_bfe_u32 v5, v0, 4, 2")
        a("v_lshl_add_u32 v5, v4, 2, v5")
        a("v_lshlrev_b32 v5, 1, v5")
        a("s_lshl_b32 s15, s2, 5")
        a("buffer_load_ushort v6, v5, s[40:43], s15 offen")
        a("s_lshl_b32 s11, s2, 6")
        a(f"s_add_u32 s12, s11, {YP}")
        for i in range(6):
            a(f"s_add_u32 s{62+i}, s11, {ZP + i*16*2560}")

        def red4(r):
            a("s_nop 0")
            a(f"v_permlane32_swap_b32 v{r}, v{r+2}")
            a(f"v_permlane32_swap_b32 v{r+1}, v{r+3}")
            a(f"v_add_f32 v{r}, v{r}, v{r+2}")
            a(f"v_add_f32 v{r+1}, v{r+1}, v{r+3}")
            a("s_nop 1")
            a(f"v_permlane16_swap_b32 v{r}, v{r+1}")
            a(f"v_add_f32 v{r}, v{r}, v{r+1}")
            a("s_nop 1")
            a(f"v_add_f32_dpp v{r}, v{r}, v{r} row_ror:8 {FULL}")
            a("s_nop 1")
            a(f"v_add_f32_dpp v{r}, v{r}, v{r} row_ror:4 {FULL}")
        a("L_ypoll2:")
        a("buffer_load_dwordx4 v[8:11], v3, s[48:51], s12 offen sc1")
        a("s_waitcnt vmcnt(0)")
        red4(8)
        a.spin_guard(57, "L_ygot2")
        a("v_cmp_u_f32 vcc, v8, v8")
        a("s_cbranch_vccnz L_ypoll2")
        a("L_ygot2:")
        a("v_cvt_pk_bf16_f32 v8, 0, v8")
        a("v_lshlrev_b32 v6, 16, v6")
        a("v_add_f32 v6, v6, v8")
        a("v_cvt_pk_bf16_f32 v6, 0, v6")
        a(f"s_mov_b32 s57, {SPIN}")
        a.stamp(6)
        a("L_zpoll:")
        for i in range(6):
            a(f"buffer_load_dwordx4 v[{8+4*i}:{11+4*i}], v3, s[48:51], s{62+i} offen sc1")
        for i in range(1, 6):
            a(f"s_waitcnt vmcnt({5-i})")
            a(f"v_pk_add_f32 v[8:9], v[8:9], v[{8+4*i}:{9+4*i}]")
            a(f"v_pk_add_f32 v[10:11], v[10:11], v[{10+4*i}:{11+4*i}]")
        a("s_nop 0")
        red4(8)
        a.spin_guard(57, "L_zgot")
        a("v_cmp_u_f32 vcc, v8, v8")
        a("s_cbranch_vccnz L_zpoll")
        a("L_zgot:")
        a.stamp(7)
        a("v_cvt_pk_bf16_f32 v8, 0, v8")
        a("v_add_f32 v6, v6, v8")
        a("v_cvt_pk_bf16_f32 v6, v6, 0")
        a("s_mov_b32 exec_lo, 0x000f000f")
        a("s_mov_b32 exec_hi, 0x000f000f")
        a("buffer_store_short v6, v5, s[44:47], s15 offen")
        a("s_cmp_lg_u32 s2, 0")
        a("s_cbranch_scc1 L_fend")
        a("s_mov_b64 exec, 1")
        a("v_mov_b32 v7, s14")
        a(f"s_mov_b32 s15, {EP}")
        a("buffer_store_dword v7, off, s[48:51], s15")
        a("L_fend:")
        a.stamp(8)
        a.stamps_out(9)
        a("s_endpgm")

    def ffn(self):
        a = self
        a("L_ffn:")
        M40 = "s_mov_b32 exec_hi, 0xff"
        MALL = "s_mov_b32 exec_hi, -1"
        a("s_lshl_b32 s11, s10, 5")
        a.srd(44, 28, 639 * 3072 + 32, "s11")
        a.srd(52, 30, 639 * 3072 + 32, "s11")
        a("s_mul_i32 s11, s10, 20480")
        a.srd(60, 32, 20480, "s11")
        a("v_lshrrev_b32 v3, 1, v0")
        a("v_mul_u32_u24 v3, 3072, v3")
        a("v_and_b32 v4, 1, v0")
        a("v_lshl_add_u32 v3, v4, 4, v3")
        a("s_mul_i32 s12, s4, 491520")
        a("s_mul_i32 s13, s4, 10240")
        a(f"s_add_u32 s13, s13, {L_W}")
        a("s_mov_b32 s15, s13")
        for t in range(5):
            for m in range(2):
                a("s_mov_b32 m0, s15")
                a("s_add_u32 s15, s15, 1024")
                a(f"buffer_load_dwordx4 v3, s[{44+8*m}:{47+8*m}], s12 offen nt lds")
            a("s_add_u32 s12, s12, 98304")
        DW, PW, B0 = 128, 160, 64
        a("v_lshlrev_b32 v4, 3, v0")
        a("s_mul_i32 s12, s4, 320")
        a("v_mov_b32 v6, 0")
        a("v_mov_b32 v7, 0")
        a(M40)
        a("buffer_load_dwordx2 v[6:7], v4, s[40:43], s12 offen")
        for r in range(16):
            a(f"buffer_load_dwordx2 v[{DW+2*r}:{DW+2*r+1}], v4, s[60:63], s12 offen offset:{1280*(r%3)} nt")
            if r % 3 == 2:
                a("s_add_u32 s12, s12, 3840")
        a(MALL)
        a.stamp(4)
        a("v_add_u32 v5, s13, v4")
        for i in range(4):
            a(f"v_mov_b32 v{8+i}, 0x3f803f80")
        a("s_waitcnt vmcnt(17)")
        for i in range(10):
            for half in range(2):
                a(f"ds_read_b64_tr_b16 v[{B0+4*i+2*half}:{B0+4*i+2*half+1}], v5 offset:{1024*i+512*half}")
        a("s_waitcnt lgkmcnt(0)")
        for t in range(5):
            for m in range(2):
                c = "0" if t == 0 else f"v[{16+4*m}:{19+4*m}]"
                b = B0 + 4 * (2 * t + m)
                a(f"v_mfma_f32_16x16x32_bf16 v[{16+4*m}:{19+4*m}], v[8:11], v[{b}:{b+3}], {c}")
        a("s_mov_b32 s12, 0x05040100")
        a("s_mov_b32 s15, 0x07060302")
        a("s_lshl_b32 s11, s4, 7")
        a("v_lshl_add_u32 v12, v0, 2, s11")
        a("s_waitcnt vmcnt(0)")
        a.stamp(5)
        for p in range(8):
            for c in range(4):
                lo, hi = DW + 4 * p + (c >> 1), DW + 4 * p + 2 + (c >> 1)
                a(f"v_perm_b32 v{PW+4*p+c}, v{hi}, v{lo}, s{12 if c % 2 == 0 else 15}")
        a("v_mov_b32_dpp v16, v20 quad_perm:[0,1,2,3] row_mask:0x2 bank_mask:0xf")
        a("s_mov_b32 exec_hi, 0")
        a(f"ds_write_b32 v12, v16 offset:{L_CS}")
        a("s_mov_b64 exec, -1")
        a("v_lshlrev_b32 v24, 16, v6")
        a("v_and_b32 v25, 0xffff0000, v6")
        a("v_lshlrev_b32 v26, 16, v7")
        a("v_and_b32 v27, 0xffff0000, v7")
        a("v_and_b32 v13, 15, v0")
        a("v_lshlrev_b32 v13, 2, v13")
        a(f"v_add_u32 v30, {L_CS}, v13")
        a("s_waitcnt lgkmcnt(0)")
        a("s_barrier")
        for w in range(4):
            a(f"ds_read2_b32 v[{16+2*w}:{17+2*w}], v30 offset0:{32*w} offset1:{32*w+16}")
        a("v_lshrrev_b32 v3, 3, v0")
        a("v_lshlrev_b32 v3, 6, v3")
        a("v_and_b32 v5, 3, v0")
        a("v_lshl_add_u32 v3, v5, 4, v3")
        a("v_bfe_u32 v5, v0, 2, 1")
        a("v_lshl_add_u32 v3, v5, 3, v3")
        a("s_mul_i32 s11, s4, 320")
        a(f"s_add_u32 s11, s11, {L_H}")
        a("v_add_u32 v3, s11, v3")
        a("v_lshrrev_b32 v5, 4, v0")
        a("v_lshl_add_u32 v5, v5, 4, s11")
        a("s_mul_i32 s11, s4, 160")
        a(f"s_add_u32 s11, s11, {L_RED}")
        a("v_lshl_add_u32 v12, v0, 2, s11")
        a(f"v_add_u32 v14, {L_RED}, v13")
        a("s_add_u32 s11, s11, 128")
        a(f"v_add_u32 v15, {L_DUM}, v4")
        a("v_writelane_b32 v15, s11, 63")
        a("v_lshlrev_b32 v4, 4, v0")
        a("s_mul_i32 s11, s4, 640")
        a(f"s_add_u32 s12, s11, {YP}")
        a("s_mul_i32 s13, s10, 2560")
        a("s_add_u32 s13, s13, s11")
        a(f"s_add_u32 s13, s13, {ZP}")
        a("v_mov_b32 v6, 0")
        a("s_waitcnt lgkmcnt(0)")
        a("v_pk_add_f32 v[16:17], v[16:17], v[18:19]")
        a("v_pk_add_f32 v[20:21], v[20:21], v[22:23]")
        a("v_pk_add_f32 v[28:29], v[16:17], v[20:21]")
        Y0 = 192
        for i in range(4):
            a(f"v_mov_b32 v{Y0+i}, 0")
        a.stamp(6)
        a(M40)
        a("L_ypoll:")
        a("s_mov_b32 s15, s12")
        for p in range(16):
            a(f"buffer_load_dwordx4 v[{Y0+4*p}:{Y0+4*p+3}], v4, s[48:51], s15 offen{' offset:2560' if p % 2 else ''} sc1")
            if p % 2 and p < 15:
                a("s_add_u32 s15, s15, 5120")
        for p in range(1, 16):
            a(f"s_waitcnt vmcnt({15-p})")
            a(f"v_pk_add_f32 v[{Y0}:{Y0+1}], v[{Y0}:{Y0+1}], v[{Y0+4*p}:{Y0+4*p+1}]")
            a(f"v_pk_add_f32 v[{Y0+2}:{Y0+3}], v[{Y0+2}:{Y0+3}], v[{Y0+4*p+2}:{Y0+4*p+3}]")
        a.spin_guard(57, "L_ygot")
        a(f"v_pk_add_f32 v[30:31], v[{Y0}:{Y0+1}], v[{Y0+2}:{Y0+3}]")
        a("v_cmp_u_f32 vcc, v30, v31")
        a("s_cbranch_vccnz L_ypoll")
        a("L_ygot:")
        a.stamp(7)
        for i in range(4):
            a(f"v_cvt_pk_bf16_f32 v{Y0+i}, 0, v{Y0+i}")
        a(f"v_pk_add_f32 v[{Y0}:{Y0+1}], v[{Y0}:{Y0+1}], v[24:25]")
        a(f"v_pk_add_f32 v[{Y0+2}:{Y0+3}], v[{Y0+2}:{Y0+3}], v[26:27]")
        a(f"v_cvt_pk_bf16_f32 v{Y0}, v{Y0}, v{Y0+1}")
        a(f"v_cvt_pk_bf16_f32 v{Y0+1}, v{Y0+2}, v{Y0+3}")
        a(f"ds_write_b64 v3, v[{Y0}:{Y0+1}]")
        a(MALL)
        A0 = 32
        for t in range(5):
            a(f"ds_read_b128 v[{A0+4*t}:{A0+4*t+3}], v5 offset:{64*t}")
        a(f"v_dot2_f32_bf16 v30, v{Y0}, v8, 0")
        a(f"v_dot2_f32_bf16 v31, v{Y0}, v{Y0}, 0")
        a(f"v_dot2_f32_bf16 v30, v{Y0+1}, v8, v30")
        a(f"v_dot2_f32_bf16 v31, v{Y0+1}, v{Y0+1}, v31")
        a("s_nop 0")
        a.wave_reduce("v_add_f32", [30, 31])
        for t in range(5):
            a(f"s_waitcnt lgkmcnt({4-t})")
            for m in range(2):
                c = "0" if t == 0 else f"v[{16+4*m}:{19+4*m}]"
                b = B0 + 4 * (2 * t + m)
                a(f"v_mfma_f32_16x16x32_bf16 v[{16+4*m}:{19+4*m}], v[{A0+4*t}:{A0+4*t+3}], v[{b}:{b+3}], {c}")
        a("ds_write_b64 v15, v[30:31]")
        a("s_nop 6")
        a("v_mov_b32_dpp v16, v20 quad_perm:[0,1,2,3] row_mask:0x2 bank_mask:0xf")
        a("s_mov_b32 exec_hi, 0")
        a("ds_write_b32 v12, v16")
        a("s_mov_b64 exec, -1")
        a("s_waitcnt lgkmcnt(0)")
        a("s_barrier")
        for w in range(4):
            a(f"ds_read_b64 v[{32+2*w}:{33+2*w}], v6 offset:{L_RED+160*w+128}")
        for w in range(4):
            a(f"ds_read2_b32 v[{16+2*w}:{17+2*w}], v14 offset0:{40*w} offset1:{40*w+16}")
        for i in range(4):
            a(f"v_mov_b32 v{40+i}, 0")
        a("s_waitcnt lgkmcnt(4)")
        a("v_pk_add_f32 v[32:33], v[32:33], v[34:35]")
        a("v_pk_add_f32 v[36:37], v[36:37], v[38:39]")
        a("v_pk_add_f32 v[32:33], v[32:33], v[36:37]")
        a("v_mul_f32 v32, 0x3acccccd, v32")
        a("v_mul_f32 v33, 0x3acccccd, v33")
        a("v_fma_f32 v33, -v32, v32, v33")
        a("v_max_f32 v33, 0, v33")
        a("v_add_f32 v33, 0x3727c5ac, v33")
        a("v_rsq_f32 v33, v33")
        a("s_waitcnt lgkmcnt(0)")
        a("v_pk_add_f32 v[16:17], v[16:17], v[18:19]")
        a("v_pk_add_f32 v[20:21], v[20:21], v[22:23]")
        a("v_pk_add_f32 v[16:17], v[16:17], v[20:21]")
        a("v_fma_f32 v16, -v32, v28, v16")
        a("v_fma_f32 v17, -v32, v29, v17")
        a("v_mul_f32 v16, v16, v33")
        a("v_mul_f32 v17, v17, v33")
        a("v_maximum3_f32 v16, v16, 0, 0")
        a("v_mul_f32 v16, v16, v17")
        a("s_nop 1")
        a(f"v_mov_b32_dpp v17, v16 quad_perm:[1,0,3,2] {FULL}")
        a("v_cvt_pk_bf16_f32 v16, v16, v17")
        a("s_nop 1")
        for p in range(8):
            for c in range(4):
                a(f"v_dot2c_f32_bf16_dpp v{40+c}, v16, v{PW+4*p+c} row_newbcast:{2*p} {FULL}")
        a(M40)
        a("s_nop 1")
        a("buffer_store_dwordx4 v[40:43], v4, s[48:51], s13 offen sc1")
        a.stamp(8)
        a.stamps_out(9)
        a("s_endpgm")

    def text(self):
        self.gen()
        out = [HEADER.rstrip("\n"),
               f"; @launch grid=(256,1,1) block=(512,1,1) lds={LDS_BYTES}",
               '.amdgcn_target "amdgcn-amd-amdhsa--gfx950"', ".text", f".globl {NAME}_kernel", ".p2align 8",
               f".type {NAME}_kernel,@function"]
        out += self.L
        out += ['.section .rodata,"a"', ".p2align 6", f".amdhsa_kernel {NAME}_kernel",
                "  .amdhsa_next_free_vgpr 256", "  .amdhsa_next_free_sgpr 102", "  .amdhsa_accum_offset 256",
                "  .amdhsa_group_segment_fixed_size 0", "  .amdhsa_kernarg_size 96", "  .amdhsa_user_sgpr_count 2",
                "  .amdhsa_user_sgpr_kernarg_segment_ptr 1", "  .amdhsa_system_sgpr_workgroup_id_x 1",
                "  .amdhsa_float_denorm_mode_32 3", ".end_amdhsa_kernel"]
        return "\n".join(out) + "\n"


def gen(**kw):
    return G(**kw).text()


if __name__ == "__main__":
    kw = eval("dict(" + (sys.argv[2] if len(sys.argv) > 2 else "") + ")")
    open(sys.argv[1], "w").write(gen(**kw))
```

```python
import sys

NAME = "sequential_preLN__mha_block_cached__glu_gated_reglu__decode"

HEADER = """; Kernarg layout for this problem (96 bytes, ptrs only, base s[0:1]):
"""

QP = 0x000000
OP = 0x040000
YP = 0x060000
ZP = 0x070000
EP = 0x0B0000
ST = 0x100000
WS_SPAN = 0x200000
L_Q = 0x0000
L_PROG = 0x0200
L_DONE = 0x0204
L_O = 0x0400
L_H = 0x1400
L_RED = 0x1900
L_CS = 0x1C00
L_DUM = 0x1E00
L_W = 0x2000
LDS_BYTES = 0x2000 + 49152

FULL = "row_mask:0xf bank_mask:0xf"
LOG2E = 0x3FB8AA3B
SCALE = 0x3D93CD3A
TAGK = 0x9E3779B9
SPIN = 1 << 17


class G:
    def __init__(self, diag=False, P=6, trig=0, pace=9, warm=False, prio=0, hold=0):
        self.L = []
        self.diag = diag
        self.P = P
        self.trig = trig
        self.pace = pace
        self.warm = warm
        self.hold = hold
        self.prio = prio
        self.nst = 0

    def __call__(self, s):
        for ln in s.strip("\n").split("\n"):
            ln = ln.strip()
            if not ln:
                continue
            self.L.append(ln if ln.endswith(":") else "  " + ln)

    def stamp(self, i):
        if self.diag:
            self(f"s_memrealtime s[{70+2*i}:{71+2*i}]")

    def stamps_out(self, n, tmpv=2):
        if not self.diag:
            return
        a = self
        a("s_mov_b64 exec, -1")
        a("s_waitcnt lgkmcnt(0)")
        a(f"v_mov_b32 v{tmpv}, 0")
        for i in range(n):
            a(f"v_writelane_b32 v{tmpv}, s{70+2*i}, {i}")
        a("s_getreg_b32 s68, hwreg(HW_REG_XCC_ID)")
        a(f"v_writelane_b32 v{tmpv}, s68, 15")
        a("s_lshl_b32 s68, s2, 3")
        a("s_add_u32 s68, s68, s3")
        a("s_lshl_b32 s68, s68, 6")
        a(f"s_add_u32 s68, s68, {ST}")
        a(f"v_lshlrev_b32 v{tmpv+1}, 2, v0")
        a("s_mov_b64 exec, 0xffff")
        a(f"buffer_store_dword v{tmpv}, v{tmpv+1}, s[48:51], s68 offen")

    def srd(self, d, lo, nbytes, off=None):
        a = self
        if off is None:
            a(f"s_mov_b32 s{d}, s{lo}")
            a(f"s_mov_b32 s{d+1}, s{lo+1}")
        else:
            a(f"s_add_u32 s{d}, s{lo}, {off}")
            a(f"s_addc_u32 s{d+1}, s{lo+1}, 0")
        a(f"s_mov_b32 s{d+2}, {nbytes}")
        a(f"s_mov_b32 s{d+3}, 0x20000")

    def wave_reduce(self, op, regs):
        a = self
        steps = [f"quad_perm:[1,0,3,2] {FULL}", f"quad_perm:[2,3,0,1] {FULL}", f"row_half_mirror {FULL}",
                 f"row_mirror {FULL}", "row_bcast:15 row_mask:0xa bank_mask:0xf", "row_bcast:31 row_mask:0xc bank_mask:0xf"]
        pad = max(0, 2 - (len(regs) - 1))
        a("s_nop 1")
        for si, st in enumerate(steps):
            for r in regs:
                a(f"{op}_dpp v{r}, v{r}, v{r} {st}")
            if pad and si < len(steps) - 1:
                a(f"s_nop {pad-1}")

    def reduce_scatter24(self, acc):
        a = self
        a("s_nop 2")
        for i in range(3):
            for j in range(4):
                a(f"v_permlane32_swap_b32 v{acc+8*i+j}, v{acc+8*i+j+4}")
        for i in range(3):
            for j in range(4):
                a(f"v_add_f32 v{acc+8*i+j}, v{acc+8*i+j}, v{acc+8*i+j+4}")
        for i in range(3):
            for j in range(2):
                a(f"v_permlane16_swap_b32 v{acc+8*i+j}, v{acc+8*i+j+2}")
        for i in range(3):
            for j in range(2):
                a(f"v_add_f32 v{acc+8*i+j}, v{acc+8*i+j}, v{acc+8*i+j+2}")
        for i in range(3):
            a(f"v_add_f32_dpp v{acc+8*i+2}, v{acc+8*i}, v{acc+8*i} row_ror:8 row_mask:0xf bank_mask:0x3")
        for i in range(3):
            a(f"v_add_f32_dpp v{acc+8*i+2}, v{acc+8*i+1}, v{acc+8*i+1} row_ror:8 row_mask:0xf bank_mask:0xc")
        return [acc + 2, acc + 10, acc + 18]

    def colperm(self, d, t):
        a = self
        a(f"v_and_b32 v{d}, 7, v0")
        a(f"v_lshlrev_b32 v{d}, 3, v{d}")
        a(f"v_bfe_u32 v{t}, v0, 3, 3")
        a(f"v_add_u32 v{d}, v{d}, v{t}")

    def spin_guard(self, sreg, label):
        self(f"s_sub_u32 s{sreg}, s{sreg}, 1")
        self(f"s_cbranch_scc1 {label}")

    def gen(self):
        a = self
        P = self.P
        a(f"{NAME}_kernel:")
        a("s_cmp_ge_u32 s2, 256")
        a("s_cbranch_scc1 L_end")
        a("s_load_dwordx16 s[16:31], s[0:1], 0")
        a("s_load_dwordx8 s[32:39], s[0:1], 64")
        a.stamp(0)
        if self.hold:
            a("s_memrealtime s[96:97]")
        a("v_lshrrev_b32 v1, 6, v0")
        a("v_and_b32 v0, 63, v0")
        a("v_readfirstlane_b32 s3, v1")
        a("s_mul_i32 s4, s2, 393216")
        a("v_lshrrev_b32 v1, 3, v0")
        a("v_and_b32 v2, 7, v0")
        a("s_cmp_ge_u32 s3, 4")
        a("s_cbranch_scc1 L_service")
        self.stream()
        self.service()
        a("L_end:")
        a("s_endpgm")

    def stream(self):
        a = self
        P = self.P
        Q, ACC, VL, T = 2, 14, 38, 40
        RING, PARK = 48, 96
        a("v_mul_u32_u24 v1, 384, v1")
        a("v_lshl_add_u32 v1, v2, 4, v1")
        a("s_mul_i32 s52, s3, 3072")
        a("s_waitcnt lgkmcnt(0)")
        a.srd(40, 18, 393216, "s4")
        a.srd(44, 20, 393216, "s4")

        def issue(srd, r):
            for i in range(3):
                a(f"buffer_load_dwordx4 v[{r+4*i}:{r+4*i+3}], v1, s[{srd}:{srd+3}], s52 offen offset:{128*i} nt")

        n = 0
        for t in range(P + 2):
            base = PARK + 24 * t if t < P else RING + 24 * (t - P)
            for kv in range(2):
                if n * 3 > self.pace:
                    a(f"s_waitcnt vmcnt({self.pace})")
                issue(40 + 4 * kv, base + 12 * kv)
                n += 1
                if n == 2:
                    a.srd(48, 38, WS_SPAN)
                    for i in range(24):
                        a(f"v_mov_b32 v{ACC+i}, 0")
                    a(f"v_mov_b32 v{VL}, 0")
                    a("s_mov_b32 s54, 0xff7fffff")
                    a(f"s_mov_b32 s55, {SCALE}")
                    a(f"s_mov_b32 s56, {LOG2E}")
                    a("v_lshlrev_b32 v44, 4, v2")
                    a(f"v_mov_b32 v45, {L_PROG}")
                    a("v_mov_b32 v46, 1")
                    a("s_getpc_b64 s[58:59]")
                    a("L_pc0:")
                    a("s_add_u32 s58, s58, L_rescale-L_pc0")
                    a("s_addc_u32 s59, s59, 0")
            a("s_add_u32 s52, s52, 12288")
        a.stamp(1)
        a("s_barrier")
        for i in range(3):
            a(f"ds_read_b128 v[{Q+4*i}:{Q+4*i+3}], v44 offset:{L_Q+128*i}")
        a.stamp(2)
        a("s_waitcnt lgkmcnt(0)")

        cnt = [0]

        def scores(r, reissue):
            a(f"v_mov_b32 v{T}, 0")
            for i in range(12):
                a(f"v_dot2c_f32_bf16 v{T}, v{r+i}, v{Q+i}")
            if reissue:
                issue(40, r)
            else:
                a("s_nop 2")
            a(f"v_add_f32_dpp v{T}, v{T}, v{T} quad_perm:[1,0,3,2] {FULL}")
            a("s_nop 1")
            a(f"v_add_f32_dpp v{T}, v{T}, v{T} quad_perm:[2,3,0,1] {FULL}")
            a("s_nop 1")
            a(f"v_add_f32_dpp v{T}, v{T}, v{T} row_half_mirror {FULL}")
            a(f"v_cvt_pk_bf16_f32 v{T}, 0, v{T}")
            a(f"v_mul_f32 v{T}, s55, v{T}")
            a(f"v_cvt_pk_bf16_f32 v{T}, 0, v{T}")
            a(f"v_mul_f32 v{T}, s56, v{T}")
            a(f"v_cmp_lt_f32 vcc, s54, v{T}")
            cnt[0] += 1
            a(f"s_cbranch_vccz L_nr{cnt[0]}")
            a("s_swappc_b64 s[60:61], s[58:59]")
            a(f"L_nr{cnt[0]}:")
            a(f"v_subrev_f32 v{T}, s54, v{T}")
            a(f"v_exp_f32 v{T}, v{T}")
            a("s_nop 0")
            a(f"v_add_f32 v{VL}, v{VL}, v{T}")
            a(f"v_cvt_pk_bf16_f32 v{T+1}, v{T}, 0")
            a(f"v_cvt_pk_bf16_f32 v{T+2}, 0, v{T}")

        def accum(r, reissue):
            for i in range(12):
                a(f"v_dot2c_f32_bf16 v{ACC+2*i}, v{r+i}, v{T+1}")
                a(f"v_dot2c_f32_bf16 v{ACC+2*i+1}, v{r+i}, v{T+2}")
            if reissue:
                issue(44, r)
                a("s_add_u32 s52, s52, 12288")
                a("s_min_u32 s52, s52, 393216")

        if self.pace > 9:
            a("s_waitcnt vmcnt(12)")
        for t in range(P):
            scores(PARK + 24 * t, False)
            accum(PARK + 24 * t + 12, False)
        a.stamp(3)
        assert (32 - P) % 2 == 0
        a(f"s_mov_b32 s53, {(32-P)//2}")
        a(".p2align 3")
        a("L_loop:")
        for t in range(2):
            a("s_waitcnt vmcnt(9)")
            scores(RING + 24 * t, True)
            a("s_waitcnt vmcnt(9)")
            accum(RING + 24 * t + 12, True)
        a("s_mov_b64 exec, 1")
        a("ds_add_u32 v45, v46")
        a("s_mov_b64 exec, -1")
        a("s_sub_u32 s53, s53, 1")
        a("s_cmp_lg_u32 s53, 0")
        a("s_cbranch_scc1 L_loop")
        a.stamp(4)
        res = a.reduce_scatter24(ACC)
        a(f"v_add_f32_dpp v{VL}, v{VL}, v{VL} row_ror:8 {FULL}")
        a.colperm(T, T + 1)
        a(f"v_add_f32_dpp v{VL}, v{VL}, v{VL} row_bcast:15 row_mask:0xa bank_mask:0xf")
        a("s_lshl_b32 s5, s3, 10")
        a(f"v_lshl_add_u32 v{T}, v{T}, 2, s5")
        a(f"v_add_f32_dpp v{VL}, v{VL}, v{VL} row_bcast:31 row_mask:0xc bank_mask:0xf")
        a(f"v_mov_b32 v{VL+1}, s54")
        for i in range(3):
            a(f"ds_write_b32 v{T}, v{res[i]} offset:{L_O+256*i}")
        a(f"v_mov_b32 v{T+1}, s5")
        a("s_mov_b32 exec_lo, 0")
        a("s_mov_b32 exec_hi, 0x80000000")
        a(f"ds_write_b64 v{T+1}, v[{VL}:{VL+1}] offset:{L_O+768}")
        a(f"ds_add_rtn_u32 v47, v45, v46 offset:{L_DONE-L_PROG}")
        a("s_mov_b64 exec, -1")
        a(f"v_lshlrev_b32 v{T}, 4, v0")
        a(f"v_mov_b32 v{T+1}, 0")
        a("s_waitcnt lgkmcnt(0)")
        a("v_readlane_b32 s5, v47, 63")
        a("s_lshl_b32 s6, s2, 9")
        a(f"s_add_u32 s6, s6, {OP}")
        a("s_cmp_lg_u32 s5, 3")
        a("s_cbranch_scc1 L_sdone")
        E = 96
        for w in range(4):
            a(f"ds_read_b64 v[{E+2*w}:{E+1+2*w}], v{T+1} offset:{L_O+768+1024*w}")
        for w in range(4):
            a(f"ds_read_b128 v[{E+8+4*w}:{E+11+4*w}], v{T} offset:{L_O+1024*w}")
        a(f"v_lshlrev_b32 v{T+2}, 3, v0")
        a("s_waitcnt lgkmcnt(4)")
        a(f"v_max3_f32 v{E+25}, v{E+1}, v{E+3}, v{E+5}")
        a(f"v_max_f32 v{E+25}, v{E+25}, v{E+7}")
        for w in range(4):
            a(f"v_sub_f32 v{E+1+2*w}, v{E+1+2*w}, v{E+25}")
        for w in range(4):
            a(f"v_exp_f32 v{E+1+2*w}, v{E+1+2*w}")
        a(f"v_mul_f32 v{E+24}, v{E}, v{E+1}")
        for w in range(1, 4):
            a(f"v_fmac_f32 v{E+24}, v{E+2*w}, v{E+1+2*w}")
        a("s_waitcnt lgkmcnt(0)")
        for j in range(4):
            a(f"v_mul_f32 v{E+8+j}, v{E+8+j}, v{E+1}")
        for w in range(1, 4):
            for j in range(4):
                a(f"v_fmac_f32 v{E+8+j}, v{E+8+4*w+j}, v{E+1+2*w}")
        a("s_mov_b32 exec_hi, 0xffff")
        a(f"v_cvt_pk_bf16_f32 v{E+24}, v{E+8}, v{E+9}")
        a(f"v_cvt_pk_bf16_f32 v{E+25}, v{E+10}, v{E+11}")
        a("s_mov_b32 exec_hi, 0x1ffff")
        a(f"buffer_store_dwordx2 v[{E+24}:{E+25}], v{T+2}, s[48:51], s6 offen sc1")
        a("L_sdone:")
        a.stamp(5)
        a.stamps_out(6)
        a("s_endpgm")
        a("L_rescale:")
        a(f"v_mov_b32 v{T+1}, v{T}")
        a(f"v_mov_b32 v{T+2}, s54")
        a("s_nop 0")
        a(f"v_max_f32_dpp v{T+1}, v{T+1}, v{T+1} row_ror:8 {FULL}")
        a("s_nop 1")
        a(f"v_max_f32_dpp v{T+1}, v{T+1}, v{T+1} row_bcast:15 row_mask:0xa bank_mask:0xf")
        a("s_nop 1")
        a(f"v_max_f32_dpp v{T+1}, v{T+1}, v{T+1} row_bcast:31 row_mask:0xc bank_mask:0xf")
        a("s_nop 0")
        a(f"v_readlane_b32 s54, v{T+1}, 63")
        a("s_nop 1")
        a(f"v_subrev_f32 v{T+2}, s54, v{T+2}")
        a(f"v_exp_f32 v{T+2}, v{T+2}")
        a("s_nop 0")
        for i in range(25):
            a(f"v_mul_f32 v{ACC+i}, v{ACC+i}, v{T+2}")
        a("s_setpc_b64 s[60:61]")

    def service(self):
        a = self
        a("L_service:")
        if self.prio:
            a(f"s_setprio {self.prio}")
        a("s_sub_u32 s4, s3, 4")
        a("s_waitcnt lgkmcnt(0)")
        a.srd(48, 38, WS_SPAN)
        a.srd(40, 16, 1280)
        a(f"s_load_dword s14, s[38:39], {EP}")
        a("s_and_b32 s5, s2, 7")
        a("s_lshr_b32 s6, s2, 3")
        a("s_mul_i32 s7, s5, 20")
        a("s_add_u32 s7, s7, s6")
        a("s_mul_i32 s8, s7, 6554")
        a("s_lshr_b32 s8, s8, 16")
        a("s_mul_i32 s9, s8, 10")
        a("s_sub_u32 s9, s7, s9")
        a("s_mul_i32 s10, s5, 12")
        a("s_add_u32 s10, s10, s6")
        a("s_sub_u32 s10, s10, 20")
        a(f"s_mov_b32 s57, {SPIN}")
        a("s_cmp_eq_u32 s4, 0")
        a("s_cbranch_scc1 L_qphase")
        a("s_cmp_eq_u32 s4, 1")
        a("s_cbranch_scc0 L_b1")
        for i in range(4):
            a(f"v_mov_b32 v{4+i}, -1")
        a("v_lshlrev_b32 v3, 4, v0")
        a("s_lshl_b32 s11, s2, 9")
        a(f"s_add_u32 s11, s11, {OP}")
        a("s_mov_b32 exec_hi, 0")
        a("buffer_store_dwordx4 v[4:7], v3, s[48:51], s11 offen sc1")
        a("s_cmp_ge_u32 s2, 160")
        a("s_cbranch_scc1 L_clrz")
        a("s_mul_i32 s11, s8, 2560")
        a("s_lshl_b32 s12, s9, 8")
        a("s_add_u32 s11, s11, s12")
        a(f"s_add_u32 s11, s11, {YP}")
        a("s_mov_b64 exec, 0xffff")
        a("buffer_store_dwordx4 v[4:7], v3, s[48:51], s11 offen sc1")
        a("s_branch L_clrd")
        a("L_clrz:")
        a("s_mul_i32 s11, s10, 2560")
        a(f"s_add_u32 s11, s11, {ZP}")
        a("buffer_store_dwordx4 v[4:7], v3, s[48:51], s11 offen offset:2048 sc1")
        a("s_mov_b64 exec, -1")
        a("buffer_store_dwordx4 v[4:7], v3, s[48:51], s11 offen sc1")
        a("buffer_store_dwordx4 v[4:7], v3, s[48:51], s11 offen offset:1024 sc1")
        a("L_clrd:")
        a("s_mov_b64 exec, 1")
        a("v_mov_b32 v8, 0")
        a("v_mov_b32 v9, 1")
        a("s_waitcnt vmcnt(0)")
        a("global_atomic_add v8, v9, s[36:37]")
        a("s_mov_b64 exec, -1")
        a("s_branch L_b1")

        a("L_qphase:")
        W0, ACC = 64, 32
        a("s_mul_i32 s11, s5, 983040")
        a("s_mul_i32 s12, s6, 384")
        a("s_add_u32 s11, s11, s12")
        a.srd(44, 22, 79 * 12288 + 384, "s11")
        a("v_lshlrev_b32 v3, 2, v0")
        for i in range(5):
            a(f"buffer_load_dword v{4+i}, v3, s[40:43], 0 offen offset:{256*i}")
        a("v_mul_u32_u24 v3, 20, v1")
        a("s_mul_i32 s12, s5, 160")
        a("buffer_load_dwordx4 v[12:15], v3, s[40:43], s12 offen")
        a("buffer_load_dword v16, v3, s[40:43], s12 offen offset:16")
        a("s_mov_b32 s13, 122880")
        a("v_mul_lo_u32 v3, v1, s13")
        a("v_lshl_add_u32 v3, v2, 4, v3")
        a("s_mov_b32 s12, 0")
        for g in range(10):
            for i in range(3):
                r = W0 + 12 * g + 4 * i
                a(f"buffer_load_dwordx4 v[{r}:{r+3}], v3, s[44:47], s12 offen offset:{128*i} nt")
            if g < 9:
                a("s_add_u32 s12, s12, 12288")
        a("v_mov_b32 v18, 0")
        a("v_mov_b32 v19, 0")
        a(f"ds_write_b64 v18, v[18:19] offset:{L_PROG}")
        for i in range(24):
            a(f"v_mov_b32 v{ACC+i}, 0")
        a("s_waitcnt vmcnt(32)")
        for i in range(5):
            a(f"v_lshlrev_b32 v{20+2*i}, 16, v{4+i}")
            a(f"v_and_b32 v{21+2*i}, 0xffff0000, v{4+i}")
        a("v_add_f32 v4, v20, v21")
        for i in range(2, 10):
            a(f"v_add_f32 v4, v4, v{20+i}")
        a.wave_reduce("v_add_f32", [4])
        a("s_nop 0")
        a("v_readlane_b32 s12, v4, 63")
        a("v_mov_b32 v5, 0x3acccccd")
        a("s_nop 0")
        a("v_mul_f32 v5, s12, v5")
        a("v_mov_b32 v4, 0")
        for i in range(10):
            a(f"v_sub_f32 v6, v{20+i}, v5")
            a("v_fmac_f32 v4, v6, v6")
        a.wave_reduce("v_add_f32", [4])
        a("s_nop 0")
        a("v_readlane_b32 s12, v4, 63")
        a("v_mov_b32 v6, 0x3acccccd")
        a("v_cvt_pk_bf16_f32 v5, 0, v5")
        a("v_mul_f32 v6, s12, v6")
        a("v_cvt_pk_bf16_f32 v6, 0, v6")
        a("v_add_f32 v6, 0x3727c5ac, v6")
        a("v_cvt_pk_bf16_f32 v6, 0, v6")
        a("v_sqrt_f32 v6, v6")
        a("s_nop 0")
        a("v_cvt_pk_bf16_f32 v6, 0, v6")
        a("v_rcp_f32 v7, v6")
        a("s_waitcnt vmcnt(30)")
        for i in range(5):
            a(f"v_lshlrev_b32 v{20+2*i}, 16, v{12+i}")
            a(f"v_and_b32 v{21+2*i}, 0xffff0000, v{12+i}")
        for g in range(10):
            a(f"v_sub_f32 v8, v{20+g}, v5")
            a("v_cvt_pk_bf16_f32 v8, 0, v8")
            a("v_mul_f32 v9, v8, v7")
            a("v_fma_f32 v10, -v9, v6, v8")
            a("v_fmac_f32 v9, v10, v7")
            a("v_cvt_pk_bf16_f32 v10, v9, 0")
            a("v_cvt_pk_bf16_f32 v11, 0, v9")
            a(f"s_waitcnt vmcnt({27-3*g})")
            for i in range(12):
                a(f"v_dot2c_f32_bf16 v{ACC+2*i}, v{W0+12*g+i}, v10")
                a(f"v_dot2c_f32_bf16 v{ACC+2*i+1}, v{W0+12*g+i}, v11")
        a.stamp(1)
        res = a.reduce_scatter24(ACC)
        a("s_waitcnt lgkmcnt(0)")
        a(f"s_add_u32 s14, s14, {TAGK}")
        for i in range(3):
            a(f"v_mov_b32 v{4+i}, v{res[i]}")
        a("v_mov_b32 v7, s14")
        a("v_lshlrev_b32 v3, 4, v0")
        a("s_lshl_b32 s11, s2, 10")
        a("buffer_store_dwordx4 v[4:7], v3, s[48:51], s11 offen sc1")
        a("s_lshl_b32 s11, s6, 13")
        a("s_add_u32 s12, s11, 4096")
        a.colperm(8, 9)
        a("v_lshlrev_b32 v8, 1, v8")
        a("L_qpoll:")
        for p in range(8):
            a(f"buffer_load_dwordx4 v[{64+4*p}:{67+4*p}], v3, s[48:51], s{11+p//4} offen offset:{1024*(p%4)} sc1")
        a.spin_guard(57, "L_qgot")
        a("s_waitcnt vmcnt(0)")
        a("v_xor_b32 v9, s14, v67")
        for p in range(1, 8):
            a(f"v_xor_b32 v10, s14, v{67+4*p}")
            a("v_or_b32 v9, v9, v10")
        a("v_cmp_ne_u32 vcc, 0, v9")
        a("s_cbranch_vccnz L_qpoll")
        a("L_qgot:")
        a("s_waitcnt vmcnt(0)")
        for i in range(3):
            for p in range(1, 8):
                a(f"v_add_f32 v{64+i}, v{64+i}, v{64+4*p+i}")
            a(f"v_cvt_pk_bf16_f32 v{64+i}, v{64+i}, 0")
            a(f"ds_write_b16 v8, v{64+i} offset:{L_Q+128*i}")
        a.stamp(2)
        a("s_waitcnt lgkmcnt(0)")
        a("s_branch L_b1x")

        a("L_b1:")
        a("s_waitcnt lgkmcnt(0)")
        a(f"s_add_u32 s14, s14, {TAGK}")
        a("L_b1x:")
        a("s_barrier")
        a("v_mov_b32 v8, 0")
        a("L_chk:")
        a("global_load_dword v9, v8, s[36:37] sc1")
        a.spin_guard(57, "L_chkd")
        a("s_waitcnt vmcnt(0)")
        a("v_cmp_gt_u32 vcc, 0x100, v9")
        a("s_cbranch_vccz L_chkd")
        a("s_sleep 16")
        a("s_branch L_chk")
        a("L_chkd:")
        a(f"s_mov_b32 s57, {SPIN}")
        a.stamp(3)
        if self.trig > 0:
            a("L_trig:")
            a(f"ds_read_b32 v9, v8 offset:{L_PROG}")
            a.spin_guard(57, "L_trigd")
            a("s_waitcnt lgkmcnt(0)")
            a(f"v_cmp_gt_u32 vcc, {self.trig}, v9")
            a("s_cbranch_vccz L_trigd")
            a("s_sleep 4")
            a("s_branch L_trig")
            a("L_trigd:")
            a("s_waitcnt lgkmcnt(0)")
            a(f"s_mov_b32 s57, {SPIN}")
        a("s_waitcnt vmcnt(0)")
        a("s_cmp_ge_u32 s2, 160")
        a("s_cbranch_scc1 L_ffn")
        self.wo()
        self.ffn()

    def wo(self):
        a = self
        a("s_mul_i32 s11, s8, 491520")
        a("s_lshl_b32 s12, s9, 7")
        a("s_add_u32 s11, s11, s12")
        a.srd(44, 24, 383 * 1280 + 128, "s11")
        a("v_mul_u32_u24 v3, 1280, v1")
        a("v_bfe_u32 v4, v0, 4, 1")
        a("v_lshlrev_b32 v4, 1, v4")
        a("v_xor_b32 v4, v4, v2")
        a("v_xor_b32 v5, 4, v4")
        a("v_lshl_add_u32 v4, v4, 4, v3")
        a("v_lshl_add_u32 v5, v5, 4, v3")
        a("s_mul_i32 s12, s4, 122880")
        a("s_mul_i32 s13, s4, 12288")
        a(f"s_add_u32 s13, s13, {L_W}")
        for i in range(12):
            a("s_mov_b32 m0, s13")
            a("s_add_u32 s13, s13, 1024")
            a(f"buffer_load_dwordx4 v{4+((i>>1)&1)}, s[44:47], s12 offen nt lds")
            a("s_add_u32 s12, s12, 10240")
        a.stamp(4)
        a("s_waitcnt vmcnt(0)")
        a.stamp(5)
        a("s_barrier")
        a("s_cmp_ge_u32 s4, 2")
        a("s_cbranch_scc1 L_fin")
        B0 = 64
        a("v_lshrrev_b32 v3, 4, v0")
        a("v_bfe_u32 v4, v0, 2, 2")
        a("v_lshl_add_u32 v5, v3, 4, v4")
        a("v_lshlrev_b32 v5, 7, v5")
        a("v_and_b32 v6, 3, v0")
        a("v_lshl_add_u32 v5, v6, 3, v5")
        a("v_bfe_u32 v6, v0, 3, 2")
        a("s_lshl_b32 s12, s4, 1")
        a("v_xor_b32 v6, s12, v6")
        a("v_xor_b32 v7, 1, v6")
        a("v_lshl_add_u32 v6, v6, 5, v5")
        a("v_lshl_add_u32 v7, v7, 5, v5")
        for hj in range(6):
            for tb in range(2):
                for blk in range(2):
                    for half in range(2):
                        r = B0 + 4 * ((hj * 2 + tb) * 2 + blk) + 2 * half
                        row = 64 * hj + 8 * tb + 4 * half
                        a(f"ds_read_b64_tr_b16 v[{r}:{r+1}], v{6+blk} offset:{L_W+row*128}")
        a("v_bfe_u32 v8, v0, 1, 3")
        a("v_lshlrev_b32 v8, 9, v8")
        a("v_lshl_add_u32 v8, v3, 5, v8")
        a("v_and_b32 v9, 1, v0")
        a("v_lshl_add_u32 v8, v9, 4, v8")
        a("v_lshlrev_b32 v9, 1, v3")
        a("v_xor_b32 v9, v9, v0")
        a("v_and_b32 v9, 15, v9")
        a("v_lshlrev_b32 v9, 9, v9")
        a("s_lshl_b32 s11, s8, 13")
        a(f"s_add_u32 s11, s11, {OP}")
        a("s_add_u32 s12, s11, 4096")
        a("s_mul_i32 s13, s8, 2560")
        a("s_lshl_b32 s15, s9, 8")
        a("s_add_u32 s13, s13, s15")
        a("s_lshl_b32 s15, s4, 7")
        a("s_add_u32 s13, s13, s15")
        a(f"s_add_u32 s13, s13, {YP}")
        a("v_lshlrev_b32 v10, 2, v0")
        a("s_waitcnt lgkmcnt(0)")
        a.stamp(6)
        A0, D0 = 16, 160
        a("L_opoll:")
        a("buffer_load_dwordx2 v[12:13], v9, s[48:51], s11 offen offset:384 sc1")
        for hj in range(6):
            a(f"buffer_load_dwordx4 v[{A0+4*hj}:{A0+4*hj+3}], v8, s[48:51], s{11+hj//3} offen offset:{128*(hj%3)} sc1")
        a.spin_guard(57, "L_ogo")
        a("s_waitcnt vmcnt(6)")
        a("v_cmp_u_f32 vcc, v12, v13")
        a("s_cbranch_vccnz L_opoll")
        a("L_ogo:")
        a.stamp(7)
        wsteps = [
            ["s_waitcnt vmcnt(6)", "v_mov_b32 v14, v13"],
            [f"v_max_f32_dpp v14, v14, v14 quad_perm:[1,0,3,2] {FULL}"],
            [f"v_max_f32_dpp v14, v14, v14 quad_perm:[2,3,0,1] {FULL}"],
            [f"v_max_f32_dpp v14, v14, v14 row_half_mirror {FULL}", "v_sub_f32 v13, v13, v14", "v_exp_f32 v13, v13"],
            ["v_mul_f32 v12, v12, v13"],
            [f"v_add_f32_dpp v12, v12, v12 quad_perm:[1,0,3,2] {FULL}"],
            [f"v_add_f32_dpp v12, v12, v12 quad_perm:[2,3,0,1] {FULL}"],
            [f"v_add_f32_dpp v12, v12, v12 row_half_mirror {FULL}", "v_rcp_f32 v12, v12"],
            ["v_mul_f32 v13, v13, v12"],
        ]
        k = 0
        for s in wsteps[0]:
            a(s)
        wi = 1
        for hj in range(6):
            hd, j = divmod(hj, 3)
            a(f"s_waitcnt vmcnt({5-hj})")
            for tb in range(2):
                for blk in range(2):
                    d = D0 + 4 * ((hd * 2 + tb) * 2 + blk)
                    b = B0 + 4 * ((hj * 2 + tb) * 2 + blk)
                    c = "0" if j == 0 else f"v[{d}:{d+3}]"
                    a(f"v_mfma_f32_16x16x32_bf16 v[{d}:{d+3}], v[{A0+4*hj}:{A0+4*hj+3}], v[{b}:{b+3}], {c}")
                    k += 1
                    if k % 2 == 0 and wi < len(wsteps):
                        for s in wsteps[wi]:
                            a(s)
                        wi += 1
        assert wi == len(wsteps)

        def dreg(hd, tb, blk):
            return D0 + 4 * ((hd * 2 + tb) * 2 + blk)
        for blk in range(2):
            a(f"v_add_f32 v{40+blk}, v{dreg(0,0,blk)}, v{dreg(0,1,blk)+1}")
        for blk in range(2):
            a(f"v_add_f32 v{42+blk}, v{dreg(0,0,blk)+2}, v{dreg(0,1,blk)+3}")
        for blk in range(2):
            a(f"v_mul_f32_dpp v{40+blk}, v13, v{40+blk} row_newbcast:0 {FULL}")
        for blk in range(2):
            a(f"v_mul_f32_dpp v{42+blk}, v13, v{42+blk} row_newbcast:1 {FULL}")
        for blk in range(2):
            a(f"v_add_f32 v{44+blk}, v{dreg(1,0,blk)}, v{dreg(1,1,blk)+1}")
        for blk in range(2):
            a(f"v_add_f32 v{46+blk}, v{dreg(1,0,blk)+2}, v{dreg(1,1,blk)+3}")
        for blk in range(2):
            a(f"v_fmac_f32_dpp v{40+blk}, v13, v{44+blk} row_newbcast:8 {FULL}")
        for blk in range(2):
            a(f"v_fmac_f32_dpp v{42+blk}, v13, v{46+blk} row_newbcast:9 {FULL}")
        a("v_pk_add_f32 v[40:41], v[40:41], v[42:43]")
        a("s_nop 1")
        a("v_permlane16_swap_b32 v40, v41")
        a("v_add_f32 v40, v40, v41")
        a("v_mov_b32 v41, v40")
        a("s_nop 1")
        a("v_permlane32_swap_b32 v40, v41")
        a("v_add_f32 v40, v40, v41")
        a("v_cmp_u_f32 vcc, v40, v40")
        a("s_cbranch_vccz L_ost")
        a("s_cmp_lt_i32 s57, 0")
        a("s_cbranch_scc0 L_opoll")
        a("L_ost:")
        a("s_mov_b32 exec_hi, 0")
        a("buffer_store_dword v40, v10, s[48:51], s13 offen sc1")
        a.stamp(8)
        a.stamps_out(9)
        a("s_endpgm")

        a("L_fin:")
        a("s_cmp_eq_u32 s4, 2")
        a("s_cbranch_scc0 L_end")
        a("s_cmp_ge_u32 s2, 40")
        a("s_cbranch_scc1 L_end")
        a.srd(44, 34, 1280)
        a("v_lshrrev_b32 v3, 2, v0")
        a("v_mul_u32_u24 v3, 2560, v3")
        a("v_and_b32 v4, 3, v0")
        a("v_lshl_add_u32 v3, v4, 4, v3")
        a("v_bfe_u32 v5, v0, 4, 2")
        a("v_lshl_add_u32 v5, v4, 2, v5")
        a("v_lshlrev_b32 v5, 1, v5")
        a("s_lshl_b32 s15, s2, 5")
        a("buffer_load_ushort v6, v5, s[40:43], s15 offen")
        a("s_lshl_b32 s11, s2, 6")
        a(f"s_add_u32 s12, s11, {YP}")
        for i in range(6):
            a(f"s_add_u32 s{62+i}, s11, {ZP + i*16*2560}")

        def red4(r):
            a("s_nop 0")
            a(f"v_permlane32_swap_b32 v{r}, v{r+2}")
            a(f"v_permlane32_swap_b32 v{r+1}, v{r+3}")
            a(f"v_add_f32 v{r}, v{r}, v{r+2}")
            a(f"v_add_f32 v{r+1}, v{r+1}, v{r+3}")
            a("s_nop 1")
            a(f"v_permlane16_swap_b32 v{r}, v{r+1}")
            a(f"v_add_f32 v{r}, v{r}, v{r+1}")
            a("s_nop 1")
            a(f"v_add_f32_dpp v{r}, v{r}, v{r} row_ror:8 {FULL}")
            a("s_nop 1")
            a(f"v_add_f32_dpp v{r}, v{r}, v{r} row_ror:4 {FULL}")
        a("L_ypoll2:")
        a("buffer_load_dwordx4 v[8:11], v3, s[48:51], s12 offen sc1")
        a("s_waitcnt vmcnt(0)")
        red4(8)
        a.spin_guard(57, "L_ygot2")
        a("v_cmp_u_f32 vcc, v8, v8")
        a("s_cbranch_vccnz L_ypoll2")
        a("L_ygot2:")
        a("v_cvt_pk_bf16_f32 v8, 0, v8")
        a("v_lshlrev_b32 v6, 16, v6")
        a("v_add_f32 v6, v6, v8")
        a("v_cvt_pk_bf16_f32 v6, 0, v6")
        a(f"s_mov_b32 s57, {SPIN}")
        a.stamp(6)
        a("L_zpoll:")
        for i in range(6):
            a(f"buffer_load_dwordx4 v[{8+4*i}:{11+4*i}], v3, s[48:51], s{62+i} offen sc1")
        for i in range(1, 6):
            a(f"s_waitcnt vmcnt({5-i})")
            a(f"v_pk_add_f32 v[8:9], v[8:9], v[{8+4*i}:{9+4*i}]")
            a(f"v_pk_add_f32 v[10:11], v[10:11], v[{10+4*i}:{11+4*i}]")
        a("s_nop 0")
        red4(8)
        a.spin_guard(57, "L_zgot")
        a("v_cmp_u_f32 vcc, v8, v8")
        a("s_cbranch_vccnz L_zpoll")
        a("L_zgot:")
        a.stamp(7)
        a("v_cvt_pk_bf16_f32 v8, 0, v8")
        a("v_add_f32 v6, v6, v8")
        a("v_cvt_pk_bf16_f32 v6, v6, 0")
        a("s_mov_b32 exec_lo, 0x000f000f")
        a("s_mov_b32 exec_hi, 0x000f000f")
        a("buffer_store_short v6, v5, s[44:47], s15 offen")
        a("s_cmp_lg_u32 s2, 0")
        a("s_cbranch_scc1 L_fend")
        a("s_mov_b64 exec, 1")
        a("v_mov_b32 v7, s14")
        a(f"s_mov_b32 s15, {EP}")
        a("buffer_store_dword v7, off, s[48:51], s15")
        if self.hold:
            a("s_memrealtime s[98:99]")
            a("s_waitcnt lgkmcnt(0)")
            a("s_sub_u32 s98, s98, s96")
            a("v_mov_b32 v7, s98")
            a("v_mov_b32 v8, 4")
            a("global_store_dword v8, v7, s[36:37]")
            a("L_hold:")
            a("s_memrealtime s[98:99]")
            a("s_waitcnt lgkmcnt(0)")
            a("s_sub_u32 s98, s98, s96")
            a(f"s_cmp_lt_u32 s98, {self.hold}")
            a("s_cbranch_scc1 L_hold")
        a("L_fend:")
        a.stamp(8)
        a.stamps_out(9)
        a("s_endpgm")

    def ffn(self):
        a = self
        a("L_ffn:")
        M40 = "s_mov_b32 exec_hi, 0xff"
        MALL = "s_mov_b32 exec_hi, -1"
        a("s_lshl_b32 s11, s10, 5")
        a.srd(44, 28, 639 * 3072 + 32, "s11")
        a.srd(52, 30, 639 * 3072 + 32, "s11")
        a("s_mul_i32 s11, s10, 20480")
        a.srd(60, 32, 20480, "s11")
        a("v_lshrrev_b32 v3, 1, v0")
        a("v_mul_u32_u24 v3, 3072, v3")
        a("v_and_b32 v4, 1, v0")
        a("v_lshl_add_u32 v3, v4, 4, v3")
        a("s_mul_i32 s12, s4, 491520")
        a("s_mul_i32 s13, s4, 10240")
        a(f"s_add_u32 s13, s13, {L_W}")
        a("s_mov_b32 s15, s13")
        for t in range(5):
            for m in range(2):
                a("s_mov_b32 m0, s15")
                a("s_add_u32 s15, s15, 1024")
                a(f"buffer_load_dwordx4 v3, s[{44+8*m}:{47+8*m}], s12 offen nt lds")
            a("s_add_u32 s12, s12, 98304")
        DW, PW, B0 = 128, 160, 64
        a("v_lshlrev_b32 v4, 3, v0")
        a("s_mul_i32 s12, s4, 320")
        a("v_mov_b32 v6, 0")
        a("v_mov_b32 v7, 0")
        a(M40)
        a("buffer_load_dwordx2 v[6:7], v4, s[40:43], s12 offen")
        for r in range(16):
            a(f"buffer_load_dwordx2 v[{DW+2*r}:{DW+2*r+1}], v4, s[60:63], s12 offen offset:{1280*(r%3)} nt")
            if r % 3 == 2:
                a("s_add_u32 s12, s12, 3840")
        a(MALL)
        a.stamp(4)
        a("v_add_u32 v5, s13, v4")
        for i in range(4):
            a(f"v_mov_b32 v{8+i}, 0x3f803f80")
        a("s_waitcnt vmcnt(17)")
        for i in range(10):
            for half in range(2):
                a(f"ds_read_b64_tr_b16 v[{B0+4*i+2*half}:{B0+4*i+2*half+1}], v5 offset:{1024*i+512*half}")
        a("s_waitcnt lgkmcnt(0)")
        for t in range(5):
            for m in range(2):
                c = "0" if t == 0 else f"v[{16+4*m}:{19+4*m}]"
                b = B0 + 4 * (2 * t + m)
                a(f"v_mfma_f32_16x16x32_bf16 v[{16+4*m}:{19+4*m}], v[8:11], v[{b}:{b+3}], {c}")
        a("s_mov_b32 s12, 0x05040100")
        a("s_mov_b32 s15, 0x07060302")
        a("s_lshl_b32 s11, s4, 7")
        a("v_lshl_add_u32 v12, v0, 2, s11")
        a("s_waitcnt vmcnt(0)")
        a.stamp(5)
        for p in range(8):
            for c in range(4):
                lo, hi = DW + 4 * p + (c >> 1), DW + 4 * p + 2 + (c >> 1)
                a(f"v_perm_b32 v{PW+4*p+c}, v{hi}, v{lo}, s{12 if c % 2 == 0 else 15}")
        a("v_mov_b32_dpp v16, v20 quad_perm:[0,1,2,3] row_mask:0x2 bank_mask:0xf")
        a("s_mov_b32 exec_hi, 0")
        a(f"ds_write_b32 v12, v16 offset:{L_CS}")
        a("s_mov_b64 exec, -1")
        a("v_lshlrev_b32 v24, 16, v6")
        a("v_and_b32 v25, 0xffff0000, v6")
        a("v_lshlrev_b32 v26, 16, v7")
        a("v_and_b32 v27, 0xffff0000, v7")
        a("v_and_b32 v13, 15, v0")
        a("v_lshlrev_b32 v13, 2, v13")
        a(f"v_add_u32 v30, {L_CS}, v13")
        a("s_waitcnt lgkmcnt(0)")
        a("s_barrier")
        for w in range(4):
            a(f"ds_read2_b32 v[{16+2*w}:{17+2*w}], v30 offset0:{32*w} offset1:{32*w+16}")
        a("v_lshrrev_b32 v3, 3, v0")
        a("v_lshlrev_b32 v3, 6, v3")
        a("v_and_b32 v5, 3, v0")
        a("v_lshl_add_u32 v3, v5, 4, v3")
        a("v_bfe_u32 v5, v0, 2, 1")
        a("v_lshl_add_u32 v3, v5, 3, v3")
        a("s_mul_i32 s11, s4, 320")
        a(f"s_add_u32 s11, s11, {L_H}")
        a("v_add_u32 v3, s11, v3")
        a("v_lshrrev_b32 v5, 4, v0")
        a("v_lshl_add_u32 v5, v5, 4, s11")
        a("s_mul_i32 s11, s4, 160")
        a(f"s_add_u32 s11, s11, {L_RED}")
        a("v_lshl_add_u32 v12, v0, 2, s11")
        a(f"v_add_u32 v14, {L_RED}, v13")
        a("s_add_u32 s11, s11, 128")
        a(f"v_add_u32 v15, {L_DUM}, v4")
        a("v_writelane_b32 v15, s11, 63")
        a("v_lshlrev_b32 v4, 4, v0")
        a("s_mul_i32 s11, s4, 640")
        a(f"s_add_u32 s12, s11, {YP}")
        a("s_mul_i32 s13, s10, 2560")
        a("s_add_u32 s13, s13, s11")
        a(f"s_add_u32 s13, s13, {ZP}")
        a("v_mov_b32 v6, 0")
        a("s_waitcnt lgkmcnt(0)")
        a("v_pk_add_f32 v[16:17], v[16:17], v[18:19]")
        a("v_pk_add_f32 v[20:21], v[20:21], v[22:23]")
        a("v_pk_add_f32 v[28:29], v[16:17], v[20:21]")
        Y0 = 192
        for i in range(4):
            a(f"v_mov_b32 v{Y0+i}, 0")
        a.stamp(6)
        a(M40)
        a("L_ypoll:")
        a("s_mov_b32 s15, s12")
        for p in range(16):
            a(f"buffer_load_dwordx4 v[{Y0+4*p}:{Y0+4*p+3}], v4, s[48:51], s15 offen{' offset:2560' if p % 2 else ''} sc1")
            if p % 2 and p < 15:
                a("s_add_u32 s15, s15, 5120")
        for p in range(1, 16):
            a(f"s_waitcnt vmcnt({15-p})")
            a(f"v_pk_add_f32 v[{Y0}:{Y0+1}], v[{Y0}:{Y0+1}], v[{Y0+4*p}:{Y0+4*p+1}]")
            a(f"v_pk_add_f32 v[{Y0+2}:{Y0+3}], v[{Y0+2}:{Y0+3}], v[{Y0+4*p+2}:{Y0+4*p+3}]")
        a.spin_guard(57, "L_ygot")
        a(f"v_pk_add_f32 v[30:31], v[{Y0}:{Y0+1}], v[{Y0+2}:{Y0+3}]")
        a("v_cmp_u_f32 vcc, v30, v31")
        a("s_cbranch_vccnz L_ypoll")
        a("L_ygot:")
        a.stamp(7)
        for i in range(4):
            a(f"v_cvt_pk_bf16_f32 v{Y0+i}, 0, v{Y0+i}")
        a(f"v_pk_add_f32 v[{Y0}:{Y0+1}], v[{Y0}:{Y0+1}], v[24:25]")
        a(f"v_pk_add_f32 v[{Y0+2}:{Y0+3}], v[{Y0+2}:{Y0+3}], v[26:27]")
        a(f"v_cvt_pk_bf16_f32 v{Y0}, v{Y0}, v{Y0+1}")
        a(f"v_cvt_pk_bf16_f32 v{Y0+1}, v{Y0+2}, v{Y0+3}")
        a(f"ds_write_b64 v3, v[{Y0}:{Y0+1}]")
        a(MALL)
        A0 = 32
        for t in range(5):
            a(f"ds_read_b128 v[{A0+4*t}:{A0+4*t+3}], v5 offset:{64*t}")
        a(f"v_dot2_f32_bf16 v30, v{Y0}, v8, 0")
        a(f"v_dot2_f32_bf16 v31, v{Y0}, v{Y0}, 0")
        a(f"v_dot2_f32_bf16 v30, v{Y0+1}, v8, v30")
        a(f"v_dot2_f32_bf16 v31, v{Y0+1}, v{Y0+1}, v31")
        a("s_nop 0")
        a.wave_reduce("v_add_f32", [30, 31])
        for t in range(5):
            a(f"s_waitcnt lgkmcnt({4-t})")
            for m in range(2):
                c = "0" if t == 0 else f"v[{16+4*m}:{19+4*m}]"
                b = B0 + 4 * (2 * t + m)
                a(f"v_mfma_f32_16x16x32_bf16 v[{16+4*m}:{19+4*m}], v[{A0+4*t}:{A0+4*t+3}], v[{b}:{b+3}], {c}")
        a("ds_write_b64 v15, v[30:31]")
        a("s_nop 6")
        a("v_mov_b32_dpp v16, v20 quad_perm:[0,1,2,3] row_mask:0x2 bank_mask:0xf")
        a("s_mov_b32 exec_hi, 0")
        a("ds_write_b32 v12, v16")
        a("s_mov_b64 exec, -1")
        a("s_waitcnt lgkmcnt(0)")
        a("s_barrier")
        for w in range(4):
            a(f"ds_read_b64 v[{32+2*w}:{33+2*w}], v6 offset:{L_RED+160*w+128}")
        for w in range(4):
            a(f"ds_read2_b32 v[{16+2*w}:{17+2*w}], v14 offset0:{40*w} offset1:{40*w+16}")
        for i in range(4):
            a(f"v_mov_b32 v{40+i}, 0")
        a("s_waitcnt lgkmcnt(4)")
        a("v_pk_add_f32 v[32:33], v[32:33], v[34:35]")
        a("v_pk_add_f32 v[36:37], v[36:37], v[38:39]")
        a("v_pk_add_f32 v[32:33], v[32:33], v[36:37]")
        a("v_mul_f32 v32, 0x3acccccd, v32")
        a("v_mul_f32 v33, 0x3acccccd, v33")
        a("v_fma_f32 v33, -v32, v32, v33")
        a("v_max_f32 v33, 0, v33")
        a("v_add_f32 v33, 0x3727c5ac, v33")
        a("v_rsq_f32 v33, v33")
        a("s_waitcnt lgkmcnt(0)")
        a("v_pk_add_f32 v[16:17], v[16:17], v[18:19]")
        a("v_pk_add_f32 v[20:21], v[20:21], v[22:23]")
        a("v_pk_add_f32 v[16:17], v[16:17], v[20:21]")
        a("v_fma_f32 v16, -v32, v28, v16")
        a("v_fma_f32 v17, -v32, v29, v17")
        a("v_mul_f32 v16, v16, v33")
        a("v_mul_f32 v17, v17, v33")
        a("v_maximum3_f32 v16, v16, 0, 0")
        a("v_mul_f32 v16, v16, v17")
        a("s_nop 1")
        a(f"v_mov_b32_dpp v17, v16 quad_perm:[1,0,3,2] {FULL}")
        a("v_cvt_pk_bf16_f32 v16, v16, v17")
        a("s_nop 1")
        for p in range(8):
            for c in range(4):
                a(f"v_dot2c_f32_bf16_dpp v{40+c}, v16, v{PW+4*p+c} row_newbcast:{2*p} {FULL}")
        a(M40)
        a("s_nop 1")
        a("buffer_store_dwordx4 v[40:43], v4, s[48:51], s13 offen sc1")
        a.stamp(8)
        a.stamps_out(9)
        a("s_endpgm")

    def text(self):
        self.gen()
        out = [HEADER.rstrip("\n"),
               f"; @launch grid=(256,1,1) block=(512,1,1) lds={LDS_BYTES}",
               '.amdgcn_target "amdgcn-amd-amdhsa--gfx950"', ".text", f".globl {NAME}_kernel", ".p2align 8",
               f".type {NAME}_kernel,@function"]
        out += self.L
        out += ['.section .rodata,"a"', ".p2align 6", f".amdhsa_kernel {NAME}_kernel",
                "  .amdhsa_next_free_vgpr 256", "  .amdhsa_next_free_sgpr 102", "  .amdhsa_accum_offset 256",
                "  .amdhsa_group_segment_fixed_size 0", "  .amdhsa_kernarg_size 96", "  .amdhsa_user_sgpr_count 2",
                "  .amdhsa_user_sgpr_kernarg_segment_ptr 1", "  .amdhsa_system_sgpr_workgroup_id_x 1",
                "  .amdhsa_float_denorm_mode_32 3", ".end_amdhsa_kernel"]
        return "\n".join(out) + "\n"


def gen(**kw):
    return G(**kw).text()


if __name__ == "__main__":
    kw = eval("dict(" + (sys.argv[2] if len(sys.argv) > 2 else "") + ")")
    open(sys.argv[1], "w").write(gen(**kw))
```

```python
import sys

NAME = "sequential_preLN__mha_block_cached__glu_gated_reglu__decode"

HEADER = """; Kernarg layout for this problem (96 bytes, ptrs only, base s[0:1]):
;   offset  24: d_in[3] A_wq  shape=(640, 6144) dtype=bfloat16
;   offset  32: d_in[4] A_wo  shape=(6144, 640) dtype=bfloat16
;   offset  88: d_ws      402653184 bytes workspace
"""

QP = 0x000000
OP = 0x010000
YP = 0x030000
HP = 0x048000
ZP = 0x050000
EP = 0x090000
TK = 0x098000
ST = 0x100000
WS_SPAN = 0x200000
L_Q = 0x0000
L_PROG = 0x0200
L_DONE = 0x0204
L_QCNT = 0x0208
L_QF = 0x020C
L_QS = 0x0210
L_WCNT = 0x0214
L_PUB = 0x0218
L_O = 0x0400
L_RED = 0x1400
L_DUM = 0x1900
L_W = 0x2000
LDS_BYTES = 0x2000 + 49152

FULL = "row_mask:0xf bank_mask:0xf"
LOG2E = 0x3FB8AA3B
SCALE = 0x3D93CD3A
TAGK = 0x9E3779B9
SPIN = 1 << 18
HB = 3145728

DEF = dict(diag=False, lite=False, hold=0, two=True, S=24, NP=12, skew=16, prio=3, ahead=1, qsig=8, qsleep=4,
           tcnt=None, tdone=False, gate=4, gpol="", dpol="nt", fpace=0, ps0=0, psy=0, psh=1, psz=0, kill="", w=3, bn=3, K0=-1, Kh=-1, Kz=-1, Ky=-1, glate=0, gcnt=None, gdone=False, wlate=0, gpre=False, early0=False, deep=0)


class G:
    def __init__(self, **kw):
        self.L = []
        bad = set(kw) - set(DEF)
        assert not bad, bad
        self.__dict__.update(DEF)
        self.__dict__.update(kw)

    def __call__(self, s):
        for ln in s.strip("\n").split("\n"):
            ln = ln.strip()
            if not ln:
                continue
            self.L.append(ln if ln.endswith(":") else "  " + ln)

    def stamp(self, i, lite=False):
        if self.diag or (lite and self.lite):
            self(f"s_memrealtime s[{70+2*i}:{71+2*i}]")

    def stamps_out(self, n=12, tmpv=2, lite=False):
        if not (self.diag or (lite and self.lite)):
            return
        a = self
        a("s_mov_b64 exec, -1")
        a("s_waitcnt lgkmcnt(0)")
        a(f"v_mov_b32 v{tmpv}, 0")
        for i in range(n):
            a(f"v_writelane_b32 v{tmpv}, s{70+2*i}, {i}")
        a("s_lshl_b32 s68, s2, 3")
        a("s_add_u32 s68, s68, s3")
        a("s_lshl_b32 s68, s68, 6")
        a(f"s_add_u32 s68, s68, {ST}")
        a(f"v_lshlrev_b32 v{tmpv+1}, 2, v0")
        if self.diag:
            for _ in range(3):
                a("s_sleep 100")
        a("s_mov_b64 exec, 0xffff")
        a(f"buffer_store_dword v{tmpv}, v{tmpv+1}, s[48:51], s68 offen")

    def srd(self, d, lo, nbytes, off=None):
        a = self
        if off is None:
            a(f"s_mov_b32 s{d}, s{lo}")
            a(f"s_mov_b32 s{d+1}, s{lo+1}")
        else:
            a(f"s_add_u32 s{d}, s{lo}, {off}")
            a(f"s_addc_u32 s{d+1}, s{lo+1}, 0")
        a(f"s_mov_b32 s{d+2}, {nbytes}")
        a(f"s_mov_b32 s{d+3}, 0x20000")

    RSTEPS = [f"quad_perm:[1,0,3,2] {FULL}", f"quad_perm:[2,3,0,1] {FULL}", f"row_half_mirror {FULL}",
              f"row_mirror {FULL}", "row_bcast:15 row_mask:0xa bank_mask:0xf", "row_bcast:31 row_mask:0xc bank_mask:0xf"]

    def wave_reduce(self, op, regs):
        a = self
        pad = max(0, 2 - (len(regs) - 1))
        a("s_nop 1")
        for si, st in enumerate(self.RSTEPS):
            for r in regs:
                a(f"{op}_dpp v{r}, v{r}, v{r} {st}")
            if pad and si < len(self.RSTEPS) - 1:
                a(f"s_nop {pad-1}")

    def reduce_scatter(self, acc, n):
        a = self
        a("s_nop 2")
        for i in range(n):
            for j in range(4):
                a(f"v_permlane32_swap_b32 v{acc+8*i+j}, v{acc+8*i+j+4}")
        for i in range(n):
            for j in range(4):
                a(f"v_add_f32 v{acc+8*i+j}, v{acc+8*i+j}, v{acc+8*i+j+4}")
        if n == 1:
            a("s_nop 0")
        for i in range(n):
            for j in range(2):
                a(f"v_permlane16_swap_b32 v{acc+8*i+j}, v{acc+8*i+j+2}")
        for i in range(n):
            for j in range(2):
                a(f"v_add_f32 v{acc+8*i+j}, v{acc+8*i+j}, v{acc+8*i+j+2}")
        if n == 1:
            a("s_nop 0")
        for i in range(n):
            a(f"v_add_f32_dpp v{acc+8*i+2}, v{acc+8*i}, v{acc+8*i} row_ror:8 row_mask:0xf bank_mask:0x3")
        if n == 1:
            a("s_nop 1")
        for i in range(n):
            a(f"v_add_f32_dpp v{acc+8*i+2}, v{acc+8*i+1}, v{acc+8*i+1} row_ror:8 row_mask:0xf bank_mask:0xc")
        return [acc + 8 * i + 2 for i in range(n)]

    def guard(self, label):
        self("s_sub_u32 s57, s57, 1")
        self(f"s_cbranch_scc1 {label}")

    def lds_wait(self, name, off, cnt, sleep):
        a = self
        a(f"L_lw{name}:")
        a(f"ds_read_b32 v63, v62 offset:{off}")
        a.guard(f"L_lx{name}")
        a("s_waitcnt lgkmcnt(0)")
        a(f"v_cmp_gt_u32 vcc, {cnt}, v63")
        if sleep:
            a(f"s_cbranch_vccz L_lx{name}")
            a(f"s_sleep {sleep}")
            a(f"s_branch L_lw{name}")
        else:
            a(f"s_cbranch_vccnz L_lw{name}")
        a(f"L_lx{name}:")
        a(f"s_mov_b32 s57, {SPIN}")

    def arrive(self):
        a = self
        a("s_mov_b64 exec, 1")
        a(f"ds_add_u32 v62, v61 offset:{L_WCNT}")
        a("s_mov_b64 exec, -1")

    def trigger(self, name, cnt, done):
        a = self
        if cnt == 0:
            return
        if done == 2:
            a.lds_wait("t" + name, L_PUB, 1, 1)
            return
        if cnt is None:
            a("s_add_u32 s68, s4, 1")
        else:
            a(f"s_mov_b32 s68, {cnt}")
        a.lds_wait("t" + name, L_DONE if done else L_PROG, "s68", 2)

    def gen(self):
        a = self
        a(f"{NAME}_kernel:")
        a("s_cmp_ge_u32 s2, 256")
        a("s_cbranch_scc1 L_end")
        a("s_load_dwordx16 s[16:31], s[0:1], 0")
        a("s_load_dwordx8 s[32:39], s[0:1], 64")
        a.stamp(0, True)
        if self.hold:
            a("s_memrealtime s[96:97]")
        a("v_lshrrev_b32 v1, 6, v0")
        a("v_and_b32 v0, 63, v0")
        a("v_readfirstlane_b32 s3, v1")
        a("s_and_b32 s5, s2, 7")
        a("s_lshr_b32 s6, s2, 3")
        a("v_lshrrev_b32 v1, 3, v0")
        a("v_and_b32 v2, 7, v0")
        a("s_cmp_ge_u32 s3, 4")
        a("s_cbranch_scc1 L_service")
        self.stream()
        self.service()
        a("L_end:")
        a("s_endpgm")

    def stream(self):
        a = self
        S, NP, W = self.S, self.NP, self.w
        Q, ACC, VL, T = 2, 14, 38, 40
        RING, PARK, U = 48, 96, 256 - S
        a("v_mul_u32_u24 v1, 384, v1")
        a("v_lshl_add_u32 v1, v2, 4, v1")
        a(f"s_mul_i32 s4, s6, {HB}")
        a(f"s_mul_i32 s7, s6, {self.skew}")
        a("s_lshl_b32 s8, s5, 2")
        a("s_add_u32 s8, s8, s3")
        a("s_add_u32 s52, s8, s7")
        a("s_and_b32 s52, s52, 1023")
        a("s_mul_i32 s52, s52, 3072")
        a("s_waitcnt lgkmcnt(0)")
        a.srd(40, 18, HB, "s4")

        def addr(dst):
            a(f"s_add_u32 s{dst}, s8, s7")
            a(f"s_and_b32 s{dst}, s{dst}, 1023")
            a(f"s_mul_i32 s{dst}, s{dst}, 3072")

        def loads(srd, r, so):
            for i in range(3):
                a(f"buffer_load_dwordx4 v[{r+4*i}:{r+4*i+3}], v1, s[{srd}:{srd+3}], s{so} offen offset:{128*i} nt")

        def pre():
            if W < 6:
                a(f"s_waitcnt vmcnt({W})")

        def post():
            if W > 3:
                a("s_waitcnt vmcnt(6)")

        def nxt(dst=52):
            a("s_add_u32 s8, s8, 32")
            addr(dst)

        def setup():
            a.stamp(6)
            a(f"s_load_dword s14, s[38:39], {EP}")
            a.srd(48, 38, WS_SPAN)
            for i in range(24):
                a(f"v_mov_b32 v{ACC+i}, 0")
            a(f"v_mov_b32 v{VL}, 0")
            a(f"v_mov_b32 v{VL+1}, 0xff7fffff")
            a("s_mov_b32 s54, 0xff7fffff")
            a(f"s_mov_b32 s55, {SCALE}")
            a(f"s_mov_b32 s56, {LOG2E}")
            a("v_lshlrev_b32 v44, 4, v2")
            a(f"v_mov_b32 v45, {L_PROG}")
            a("v_mov_b32 v46, 1")
            a("s_lshl_b32 s10, s6, 8")
            a(f"s_add_u32 s10, s10, {TK}")
            a("s_add_u32 s10, s38, s10")
            a("s_addc_u32 s11, s39, 0")
            a("s_getpc_b64 s[58:59]")
            a("L_pc0:")
            a("s_add_u32 s58, s58, L_rescale-L_pc0")
            a("s_addc_u32 s59, s59, 0")

        def qwait():
            a.stamp(1)
            a(f"s_mov_b32 s57, {SPIN*8}")
            a("L_qwait:")
            a(f"ds_read_b32 v47, v45 offset:{L_QF-L_PROG}")
            for i in range(3):
                a(f"ds_read_b128 v[{Q+4*i}:{Q+4*i+3}], v44 offset:{L_Q+128*i}")
            a.guard("L_qok")
            a("s_waitcnt lgkmcnt(0)")
            a("v_cmp_eq_u32 vcc, 0, v47")
            a("s_cbranch_vccnz L_qwait")
            a("L_qok:")
            a("s_waitcnt lgkmcnt(0)")
            a(f"s_add_u32 s14, s14, {TAGK}")
            a.stamp(2)

        def score(r, d):
            a(f"v_mov_b32 v{T}, 0")
            for i in range(12):
                a(f"v_dot2c_f32_bf16 v{T}, v{r+i}, v{Q+i}")
            a("s_nop 2")
            a(f"v_add_f32_dpp v{T}, v{T}, v{T} quad_perm:[1,0,3,2] {FULL}")
            a("s_nop 1")
            a(f"v_add_f32_dpp v{T}, v{T}, v{T} quad_perm:[2,3,0,1] {FULL}")
            a("s_nop 1")
            a(f"v_add_f32_dpp v{T}, v{T}, v{T} row_half_mirror {FULL}")
            a(f"v_cvt_pk_bf16_f32 v{T}, 0, v{T}")
            a(f"v_mul_f32 v{T}, s55, v{T}")
            a(f"v_cvt_pk_bf16_f32 v{T}, 0, v{T}")
            a(f"v_mul_f32 v{d}, s56, v{T}")

        cnt = [0]

        def online():
            a(f"v_cmp_lt_f32 vcc, s54, v{T}")
            cnt[0] += 1
            a(f"s_cbranch_vccz L_nr{cnt[0]}")
            a("s_swappc_b64 s[60:61], s[58:59]")
            a(f"L_nr{cnt[0]}:")

        def prob(u):
            a(f"v_subrev_f32 v{T}, s54, v{u}")
            a(f"v_exp_f32 v{T}, v{T}")
            a("s_nop 0")
            a(f"v_add_f32 v{VL}, v{VL}, v{T}")
            a(f"v_cvt_pk_bf16_f32 v{T+1}, v{T}, 0")
            a(f"v_cvt_pk_bf16_f32 v{T+2}, 0, v{T}")

        def accum(r):
            for i in range(12):
                a(f"v_dot2c_f32_bf16 v{ACC+2*i}, v{r+i}, v{T+1}")
                a(f"v_dot2c_f32_bf16 v{ACC+2*i+1}, v{r+i}, v{T+2}")

        def ask(r):
            a(f"s_mov_b32 s{r}, 1")
            a(f"s_atomic_add s{r}, s[10:11], 0x0 glc")

        def shift():
            for i in range(S - 4):
                a(f"v_mov_b32 v{U+i}, v{U+i+4}")

        if self.two:
            assert NP % 4 == 0 and S % 4 == 0 and S >= NP + 8 and PARK + 12 * NP <= U + (S - NP - 4)
            NK = (S - NP - 4) // 4
            a("s_mov_b32 s9, s8")
            for n in range(NP + 2):
                if 3 * n > W:
                    a(f"s_waitcnt vmcnt({W})")
                loads(40, PARK + 12 * n if n < NP else RING + 12 * (n - NP), 52)
                if n == 1:
                    a.srd(44, 20, HB, "s4")
                    a.srd(64, 18, HB, "s4")
                    setup()
                if n == 2:
                    a.stamp(7)
                if n == self.bn:
                    a("s_barrier")
                if n == self.qsig:
                    a(f"ds_write_b32 v45, v46 offset:{L_QS-L_PROG}")
                nxt()
            qwait()
            u0 = U + 4 * NK
            for j in range(4):
                a(f"s_waitcnt vmcnt({min(W, 6)})") if j == 0 else pre()
                loads(40, RING + 12 * ((j + 2) & 3), 52)
                nxt()
                for p in range(j * NP // 4, (j + 1) * NP // 4):
                    score(PARK + 12 * p, u0 + p)
                    a(f"v_max_f32 v{VL+1}, v{VL+1}, v{u0+p}")
                post()
                score(RING + 12 * j, u0 + NP + j)
                a(f"v_max_f32 v{VL+1}, v{VL+1}, v{u0+NP+j}")
            a.stamp(3)
            a(f"s_mov_b32 s15, {NK}")
            a(".p2align 3")
            a("L_kloop:")
            for j in range(4):
                if j == 2:
                    a("s_cmp_eq_u32 s15, 1")
                    a("s_cselect_b32 s64, s44, s40")
                    a("s_cselect_b32 s65, s45, s41")
                    a("s_cselect_b32 s8, s9, s8")
                    addr(52)
                pre()
                loads(64, RING + 12 * ((j + 2) & 3), 52)
                if j == 1:
                    a("s_add_u32 s8, s8, 32")
                else:
                    nxt()
                if j == 0:
                    shift()
                post()
                score(RING + 12 * j, U + S - 4 + j)
                a(f"v_max_f32 v{VL+1}, v{VL+1}, v{U+S-4+j}")
            a("s_sub_u32 s15, s15, 1")
            a("s_cmp_lg_u32 s15, 0")
            a("s_cbranch_scc1 L_kloop")
            a(f"v_mov_b32 v{T}, v{VL+1}")
            a("s_swappc_b64 s[60:61], s[58:59]")
            a.stamp(10)
            a(f"s_mov_b32 s15, {S//4-1}")
            a(".p2align 3")
            a("L_vloop:")
            for j in range(4):
                pre()
                loads(44, RING + 12 * ((j + 2) & 3), 52)
                nxt()
                prob(U + j)
                post()
                accum(RING + 12 * j)
            shift()
            a("s_sub_u32 s15, s15, 1")
            a("s_cmp_lg_u32 s15, 0")
            a("s_cbranch_scc1 L_vloop")
            for j in range(4):
                if j == 2 and self.ahead == 1:
                    ask(12)
                if self.ahead == 2 and j in (0, 2):
                    ask(12 + j // 2)
                pre()
                loads(40 if j == 2 else 44, RING + 12 * ((j + 2) & 3), 52)
                if j < 2:
                    nxt()
                prob(U + j)
                post()
                accum(RING + 12 * j)
            SS = S + 1
        else:
            P = NP // 2
            SS = S + 1
            a.srd(44, 20, HB, "s4")
            n = 0
            for t in range(P + 1):
                base = PARK + 24 * t if t < P else RING
                for kv in range(2):
                    if 3 * n > W:
                        a(f"s_waitcnt vmcnt({W})")
                    loads(40 + 4 * kv, base + 12 * kv, 52)
                    if n == 1:
                        setup()
                    if n == 2:
                        a.stamp(7)
                    if n == self.bn:
                        a("s_barrier")
                    if n == self.qsig:
                        a(f"ds_write_b32 v45, v46 offset:{L_QS-L_PROG}")
                    n += 1
                if t < P:
                    nxt()
            qwait()

            def tile(r):
                score(r, T); online(); prob(T); accum(r + 12)
            UU = -(-P // 4)
            pk = 0
            for u in range(UU):
                for slot in range(2):
                    o = slot ^ 1
                    nxt(52 + o)
                    a(f"s_waitcnt vmcnt({min(W, 6)})") if u == 0 and slot == 0 else pre()
                    loads(40, RING + 24 * o, 52 + o)
                    if pk < P:
                        tile(PARK + 24 * pk); pk += 1
                    post()
                    score(RING + 24 * slot, T); online(); prob(T)
                    pre()
                    loads(44, RING + 24 * o + 12, 52 + o)
                    post()
                    accum(RING + 24 * slot + 12)
                    if pk < P:
                        tile(PARK + 24 * pk); pk += 1
            a.stamp(3)
            done = P + 1 + 2 * UU
            assert done < SS and (SS - done) % 2 == 0
            a(f"s_mov_b32 s15, {(SS-done)//2}")
            a(".p2align 3")
            a("L_loop1:")
            for slot in range(2):
                o = slot ^ 1
                nxt(52 + o)
                if slot >= 2 - self.ahead:
                    a("s_cmp_lg_u32 s15, 1")
                    a(f"s_cbranch_scc1 L_na{slot}")
                    ask(12 + (slot if self.ahead == 2 else 0))
                    a(f"L_na{slot}:")
                pre()
                loads(40, RING + 24 * o, 52 + o)
                post()
                score(RING + 24 * slot, T); online(); prob(T)
                pre()
                loads(44, RING + 24 * o + 12, 52 + o)
                post()
                accum(RING + 24 * slot + 12)
            a("s_sub_u32 s15, s15, 1")
            a("s_cmp_lg_u32 s15, 0")
            a("s_cbranch_scc1 L_loop1")
        self.SS = SS
        a.stamp(9)
        if self.diag:
            a(f"s_mov_b32 s9, {SS}")
        def ticket(slot, tag):
            o = slot ^ 1
            r = 12 + (slot if self.ahead == 2 else 0)
            if self.ahead == 2:
                a("s_waitcnt lgkmcnt(1)")
                a(f"s_cmp_lg_u32 s{r}, 1")
                a(f"s_cbranch_scc1 L_tk{tag}")
            a("s_waitcnt lgkmcnt(0)")
            a(f"L_tk{tag}:")
            a(f"s_mov_b32 s8, s{r}")
            addr(52 + o)
            a("s_cmp_lt_u32 s8, 1024")
            a(f"s_cbranch_scc1 L_tg{tag}")
            a(f"s_mov_b32 s{52+o}, {HB}")
            a("s_mov_b64 exec, 1")
            a("ds_add_u32 v45, v46")
            a("s_mov_b64 exec, -1")
            a(f"s_branch L_st{tag}")
            a(f"L_tg{tag}:")
            ask(r)
            a(f"L_st{tag}:")
            if self.diag:
                a("s_add_u32 s9, s9, 1")

        a(".p2align 3")
        a("L_loop2:")
        for slot in range(2):
            o = slot ^ 1
            if self.deep:
                a(f"s_cmp_ge_u32 s8, {self.deep}")
                a(f"s_cbranch_scc1 L_dp{slot}")
            else:
                a(f"s_cmp_ge_u32 s{52+slot}, {HB}")
                a(f"s_cbranch_scc1 L_ex{slot}")
                a(f"L_re{slot}:")
            pre()
            ticket(slot, f"a{slot}")
            loads(40, RING + 24 * o, 52 + o)
            post()
            score(RING + 24 * slot, T); online(); prob(T)
            pre()
            loads(44, RING + 24 * o + 12, 52 + o)
            post()
            accum(RING + 24 * slot + 12)
        a("s_branch L_loop2")
        if self.deep:
            for slot in range(2):
                o = slot ^ 1
                a(f"L_dp{slot}:")
                a(f"s_cmp_ge_u32 s{52+slot}, {HB}")
                a(f"s_cbranch_scc1 L_ex{slot}")
                a(f"L_re{slot}:")
                ticket(slot, f"b{slot}")
                loads(40, RING + 24 * o, 52 + o)
                loads(44, RING + 24 * o + 12, 52 + o)
                a("s_waitcnt vmcnt(9)")
                score(RING + 24 * slot, T); online(); prob(T)
                a("s_waitcnt vmcnt(6)")
                accum(RING + 24 * slot + 12)
            a("s_branch L_dp0")
        for slot in range(2):
            r = 12 + slot
            a(f"L_ex{slot}:")
            if self.ahead == 2:
                a("s_waitcnt lgkmcnt(0)")
                a(f"s_cmp_lt_u32 s{r}, 1024")
                a("s_cbranch_scc0 L_ldone")
                a(f"s_mov_b32 s8, s{r}")
                a(f"s_mov_b32 s{r}, 1024")
                addr(52 + slot)
                loads(40, RING + 24 * slot, 52 + slot)
                loads(44, RING + 24 * slot + 12, 52 + slot)
                a("s_waitcnt vmcnt(6)")
                a(f"s_branch L_re{slot}")
        a("L_ldone:")
        a.stamp(4)
        res = a.reduce_scatter(ACC, 3)
        a(f"v_add_f32_dpp v{VL}, v{VL}, v{VL} row_ror:8 {FULL}")
        a(f"v_lshrrev_b32 v{T}, 3, v0")
        a(f"v_lshlrev_b32 v{T}, 2, v{T}")
        a(f"v_add_f32_dpp v{VL}, v{VL}, v{VL} row_bcast:15 row_mask:0xa bank_mask:0xf")
        a(f"v_lshl_add_u32 v{T}, v44, 1, v{T}")
        a("s_lshl_b32 s5, s3, 10")
        a(f"v_add_f32_dpp v{VL}, v{VL}, v{VL} row_bcast:31 row_mask:0xc bank_mask:0xf")
        a(f"v_add_u32 v{T}, s5, v{T}")
        a(f"v_mov_b32 v{VL+1}, s54")
        for i in range(3):
            a(f"ds_write_b32 v{T}, v{res[i]} offset:{L_O+256*i}")
        a(f"v_mov_b32 v{T+1}, s5")
        a("s_mov_b32 exec_lo, 0")
        a("s_mov_b32 exec_hi, 0x80000000")
        a(f"ds_write_b64 v{T+1}, v[{VL}:{VL+1}] offset:{L_O+768}")
        a(f"ds_add_rtn_u32 v47, v45, v46 offset:{L_DONE-L_PROG}")
        a("s_mov_b64 exec, -1")
        a(f"v_lshlrev_b32 v{T}, 4, v0")
        a(f"v_mov_b32 v{T+1}, 0")
        a("s_waitcnt lgkmcnt(0)")
        a("v_readlane_b32 s5, v47, 63")
        a("s_lshl_b32 s6, s2, 9")
        a(f"s_add_u32 s6, s6, {OP}")
        a("s_cmp_lg_u32 s5, 3")
        a("s_cbranch_scc1 L_sdone")
        E = 96
        for w in range(4):
            a(f"ds_read_b64 v[{E+2*w}:{E+1+2*w}], v{T+1} offset:{L_O+768+1024*w}")
        for w in range(4):
            a(f"ds_read_b128 v[{E+8+4*w}:{E+11+4*w}], v{T} offset:{L_O+1024*w}")
        a(f"v_lshlrev_b32 v{T+2}, 3, v0")
        a("s_waitcnt lgkmcnt(4)")
        a(f"v_max3_f32 v{E+25}, v{E+1}, v{E+3}, v{E+5}")
        a(f"v_max_f32 v{E+25}, v{E+25}, v{E+7}")
        for w in range(4):
            a(f"v_sub_f32 v{E+1+2*w}, v{E+1+2*w}, v{E+25}")
        for w in range(4):
            a(f"v_exp_f32 v{E+1+2*w}, v{E+1+2*w}")
        a(f"v_mul_f32 v{E+24}, v{E}, v{E+1}")
        for w in range(1, 4):
            a(f"v_fmac_f32 v{E+24}, v{E+2*w}, v{E+1+2*w}")
        a(f"v_writelane_b32 v{E+24}, s14, 49")
        a("s_waitcnt lgkmcnt(0)")
        for j in range(4):
            a(f"v_mul_f32 v{E+8+j}, v{E+8+j}, v{E+1}")
        for w in range(1, 4):
            for j in range(4):
                a(f"v_fmac_f32 v{E+8+j}, v{E+8+4*w+j}, v{E+1+2*w}")
        a("s_mov_b32 exec_hi, 0xffff")
        a(f"v_cvt_pk_bf16_f32 v{E+24}, v{E+8}, v{E+9}")
        a(f"v_cvt_pk_bf16_f32 v{E+25}, v{E+10}, v{E+11}")
        a("s_mov_b32 exec_hi, 0x3ffff")
        a(f"buffer_store_dwordx2 v[{E+24}:{E+25}], v{T+2}, s[48:51], s6 offen sc1")
        a(f"ds_write_b32 v45, v46 offset:{L_PUB-L_PROG}")
        a("L_sdone:")
        a.stamp(5)
        if self.diag:
            a("s_waitcnt lgkmcnt(0)")
            a("s_mov_b32 s86, s9")
            a("s_barrier")
        a.stamps_out()
        a("s_endpgm")
        a("L_rescale:")
        a(f"v_mov_b32 v{T+1}, v{T}")
        a(f"v_mov_b32 v{T+2}, s54")
        a("s_nop 0")
        a(f"v_max_f32_dpp v{T+1}, v{T+1}, v{T+1} row_ror:8 {FULL}")
        a("s_nop 1")
        a(f"v_max_f32_dpp v{T+1}, v{T+1}, v{T+1} row_bcast:15 row_mask:0xa bank_mask:0xf")
        a("s_nop 1")
        a(f"v_max_f32_dpp v{T+1}, v{T+1}, v{T+1} row_bcast:31 row_mask:0xc bank_mask:0xf")
        a("s_nop 0")
        a(f"v_readlane_b32 s54, v{T+1}, 63")
        a("s_nop 1")
        a(f"v_subrev_f32 v{T+2}, s54, v{T+2}")
        a(f"v_exp_f32 v{T+2}, v{T+2}")
        a("s_nop 0")
        for i in range(25):
            a(f"v_mul_f32 v{ACC+i}, v{ACC+i}, v{T+2}")
        a("s_setpc_b64 s[60:61]")

    def service(self):
        a = self
        W0, ACC, XN = 128, 32, 64
        a("L_service:")
        if self.prio:
            a(f"s_setprio {self.prio}")
        a("v_mov_b32 v60, 0")
        a("v_mov_b32 v61, 0")
        a("v_mov_b32 v62, 0")
        a("v_mov_b32 v63, 0")
        a(f"ds_write_b128 v62, v[60:63] offset:{L_PROG}")
        a(f"ds_write_b128 v62, v[60:63] offset:{L_QS}")
        a("s_sub_u32 s4, s3, 4")
        a("s_add_u32 s7, s5, s6")
        a("s_and_b32 s7, s7, 7")
        a("s_sub_u32 s8, s7, 3")
        a("s_sub_u32 s9, s7, 2")
        a("s_cmp_ge_u32 s9, 3")
        a(f"s_cselect_b32 s12, {320*12288 - 384}, 0")
        a("s_cselect_b32 s15, 640, 0")
        a("s_mul_i32 s11, s6, 384")
        a("s_add_u32 s11, s11, s12")
        a("s_lshl_b32 s12, s9, 7")
        a("s_add_u32 s11, s11, s12")
        a("s_mul_i32 s12, s4, 983040")
        a("s_mov_b32 s13, 122880")
        a("v_mul_lo_u32 v3, v1, s13")
        a("v_lshl_add_u32 v3, v2, 4, v3")
        a("v_lshlrev_b32 v9, 2, v0")
        a("v_mul_u32_u24 v10, 20, v1")
        a("s_mul_i32 s13, s4, 160")
        a("s_add_u32 s15, s15, s13")
        a(f"s_mov_b32 s57, {SPIN}")
        a("s_waitcnt lgkmcnt(0)")
        a("v_mov_b32 v61, 1")
        a(f"s_load_dword s14, s[38:39], {EP}")
        a.srd(40, 16, 1280)
        a.srd(48, 38, WS_SPAN)
        a.stamp(3)
        a("s_cmp_lt_u32 s9, 6")
        a("s_cbranch_scc0 L_noq1")
        a.srd(44, 22, 319 * 12288 + 128, "s11")
        for i in range(0 if 'wq' in self.kill else 10):
            a(f"buffer_load_dwordx4 v[{W0+4*i}:{W0+4*i+3}], v3, s[44:47], s12 offen nt")
            if i < 9:
                a("s_add_u32 s12, s12, 12288")
            if i == 1:
                for k in range(5):
                    a(f"buffer_load_dword v{4+k}, v9, s[40:43], 0 offen offset:{256*k}")
                a("buffer_load_dwordx4 v[12:15], v10, s[40:43], s15 offen")
                a("buffer_load_dword v16, v10, s[40:43], s15 offen offset:16")
        a("L_noq1:")
        a("s_cmp_eq_u32 s4, 3")
        a("s_cbranch_scc0 L_noclr")
        for i in range(4):
            a(f"v_mov_b32 v{56+i}, -1")
        a("v_lshlrev_b32 v55, 4, v0")
        a("s_lshl_b32 s11, s2, 9")
        a(f"s_add_u32 s11, s11, {OP}")
        a("s_mov_b64 exec, 0xffffff")
        if 'clr' not in self.kill:
            a("buffer_store_dwordx4 v[56:59], v55, s[48:51], s11 offen sc1")
        a("s_cmp_eq_u32 s7, 7")
        a("s_cbranch_scc0 L_clr2")
        a("s_lshl_b32 s11, s6, 7")
        a(f"s_add_u32 s11, s11, {HP}")
        a("s_mov_b64 exec, 0xff")
        a("buffer_store_dwordx4 v[56:59], v55, s[48:51], s11 offen sc1")
        a("L_clr2:")
        a("s_cmp_eq_u32 s7, 3")
        a("s_cbranch_scc0 L_clr3")
        a("s_mov_b64 exec, 1")
        a("s_lshl_b32 s11, s6, 8")
        a(f"s_add_u32 s11, s11, {TK}")
        a(f"v_mov_b32 v54, {32*self.SS}")
        a("buffer_store_dword v54, off, s[48:51], s11 sc1")
        a("L_clr3:")
        a("s_mov_b64 exec, -1")
        a("L_noclr:")
        a("s_cmp_lt_u32 s9, 6")
        a("s_cbranch_scc1 L_q2")
        a("s_barrier")
        a("s_branch L_noq2")
        a("L_q2:")
        for i in range(8):
            a(f"v_mov_b32 v{ACC+i}, 0")
        a("s_waitcnt vmcnt(10)")
        for i in range(5):
            a(f"v_lshlrev_b32 v{22+2*i}, 16, v{4+i}")
            a(f"v_and_b32 v{23+2*i}, 0xffff0000, v{4+i}")
        a("v_add_f32 v4, v22, v23")
        for i in range(2, 10):
            a(f"v_add_f32 v4, v4, v{22+i}")
        a.wave_reduce("v_add_f32", [4])
        a("s_nop 0")
        a("v_readlane_b32 s12, v4, 63")
        a("v_mov_b32 v5, 0x3acccccd")
        a("s_nop 0")
        a("v_mul_f32 v5, s12, v5")
        a("v_mov_b32 v4, 0")
        for i in range(10):
            a(f"v_sub_f32 v6, v{22+i}, v5")
            a("v_fmac_f32 v4, v6, v6")
        a.wave_reduce("v_add_f32", [4])
        a("s_nop 0")
        a("v_readlane_b32 s12, v4, 63")
        a("v_mov_b32 v6, 0x3acccccd")
        a("v_cvt_pk_bf16_f32 v5, 0, v5")
        a("v_mul_f32 v6, s12, v6")
        a("v_cvt_pk_bf16_f32 v6, 0, v6")
        a("v_add_f32 v6, 0x3727c5ac, v6")
        a("v_cvt_pk_bf16_f32 v6, 0, v6")
        a("v_sqrt_f32 v6, v6")
        a("s_nop 0")
        a("v_cvt_pk_bf16_f32 v6, 0, v6")
        a("v_rcp_f32 v7, v6")
        a("s_waitcnt vmcnt(8)")
        for i in range(10):
            if i % 2 == 0:
                a(f"v_lshlrev_b32 v8, 16, v{12+i//2}")
            else:
                a(f"v_and_b32 v8, 0xffff0000, v{12+i//2}")
            a("v_sub_f32 v8, v8, v5")
            a("v_cvt_pk_bf16_f32 v8, 0, v8")
            a("v_mul_f32 v9, v8, v7")
            a("v_fma_f32 v10, -v9, v6, v8")
            a("v_fmac_f32 v9, v10, v7")
            a(f"v_cvt_pk_bf16_f32 v{XN+2*i}, v9, 0")
            a(f"v_cvt_pk_bf16_f32 v{XN+2*i+1}, 0, v9")
        a.stamp(10)
        a("s_barrier")
        for i in range(10):
            if i % 2 == 0 and i:
                a(f"s_waitcnt vmcnt({8-i})")
            for j in range(4):
                a(f"v_dot2c_f32_bf16 v{ACC+2*j}, v{W0+4*i+j}, v{XN+2*i}")
                a(f"v_dot2c_f32_bf16 v{ACC+2*j+1}, v{W0+4*i+j}, v{XN+2*i+1}")
        res = a.reduce_scatter(ACC, 1)
        a("v_lshl_add_u32 v8, v2, 3, v1")
        a("s_lshl_b32 s11, s4, 8")
        a("v_lshl_add_u32 v8, v8, 2, s11")
        a(f"ds_write_b32 v8, v{res[0]} offset:{L_O}")
        a("s_mov_b64 exec, 1")
        a(f"ds_add_rtn_u32 v18, v62, v61 offset:{L_QCNT}")
        a("s_mov_b64 exec, -1")
        a("v_lshlrev_b32 v8, 2, v0")
        a("s_waitcnt lgkmcnt(0)")
        a.stamp(1)
        a("v_readfirstlane_b32 s11, v18")
        a(f"s_add_u32 s15, s14, {TAGK}")
        a("s_and_b32 s15, s15, 0xff")
        a("s_lshl_b32 s12, s6, 11")
        a("s_cmp_lg_u32 s11, 3")
        a("s_cbranch_scc1 L_noq2")
        for w in range(4):
            a(f"ds_read_b32 v{4+w}, v8 offset:{L_O+256*w}")
        a("s_lshl_b32 s11, s9, 8")
        a("s_add_u32 s11, s11, s12")
        a("s_waitcnt lgkmcnt(0)")
        a("v_add_f32 v4, v4, v5")
        a("v_add_f32 v6, v6, v7")
        a("v_add_f32 v4, v4, v6")
        a("v_and_b32 v4, 0xffffff00, v4")
        a("v_or_b32 v4, s15, v4")
        a("buffer_store_dword v4, v8, s[48:51], s11 offen sc1")
        a("L_noq2:")
        a("s_waitcnt lgkmcnt(0)")
        a(f"s_add_u32 s14, s14, {TAGK}")
        a("s_cmp_eq_u32 s4, 3")
        a("s_cbranch_scc0 L_qdone")
        if self.qsig:
            a.lds_wait("q", L_QS, 1, 2)
        a("v_lshlrev_b32 v8, 2, v0")
        a("v_lshlrev_b32 v9, 1, v0")
        a("s_lshl_b32 s11, s6, 11")
        a("s_branch L_qp1")
        a("L_qpoll:")
        a(f"s_sleep {self.qsleep}")
        a("L_qp1:")
        for i in range(6):
            a(f"buffer_load_dword v{12+i}, v8, s[48:51], s11 offen offset:{QP+256*i} sc1")
        a.guard("L_qgot")
        a("s_waitcnt vmcnt(0)")
        a("v_xor_b32 v10, s14, v12")
        for i in range(1, 6):
            a(f"v_bitop3_b32 v10, v{12+i}, s14, v10 bitop3:0xbe")
        a("v_and_b32 v10, 0xff, v10")
        a("v_cmp_ne_u32 vcc, 0, v10")
        a("s_cbranch_vccnz L_qpoll")
        a("L_qgot:")
        a("s_waitcnt vmcnt(0)")
        for i in range(6):
            a(f"v_and_b32 v{12+i}, 0xffffff00, v{12+i}")
            a(f"v_or_b32 v{12+i}, 0x80, v{12+i}")
        for i in range(3):
            a(f"v_add_f32 v{12+i}, v{12+i}, v{15+i}")
            a(f"v_cvt_pk_bf16_f32 v{12+i}, v{12+i}, 0")
            a(f"ds_write_b16 v9, v{12+i} offset:{L_Q+128*i}")
        a(f"ds_write_b32 v62, v61 offset:{L_QF}")
        a(f"s_mov_b32 s57, {SPIN}")
        a("L_qdone:")
        a.stamp(2)
        if 'tail' in self.kill:
            a("s_endpgm")
        a("s_and_b32 s69, s14, 0xff")
        a("s_cmp_lt_u32 s7, 3")
        a("s_cbranch_scc1 L_ffn")
        self.wo()
        self.ffn()

    def wo(self):
        a = self
        a("s_mul_i32 s11, s6, 245760")
        a("s_lshl_b32 s12, s8, 8")
        a("s_add_u32 s11, s11, s12")
        a.srd(44, 24, 191 * 1280 + 256, "s11")
        a("v_lshrrev_b32 v3, 4, v0")
        a("v_mul_u32_u24 v6, 1280, v3")
        a("v_lshlrev_b32 v4, 1, v3")
        a("s_lshl_b32 s12, s4, 3")
        a("v_xor_b32 v4, s12, v4")
        a("v_xor_b32 v4, v4, v0")
        a("v_and_b32 v4, 15, v4")
        a("v_xor_b32 v5, 8, v4")
        a("v_lshl_add_u32 v4, v4, 4, v6")
        a("v_lshl_add_u32 v5, v5, 4, v6")
        a("s_mul_i32 s12, s4, 61440")
        a("s_mul_i32 s13, s4, 12288")
        a(f"s_add_u32 s13, s13, {L_W}")
        a.trigger("w", self.tcnt, self.tdone)
        for i in range(12):
            if self.wlate and i == 12 - self.wlate:
                a.trigger("w2", 1, 2)
            a("s_mov_b32 m0, s13")
            a("s_add_u32 s13, s13, 1024")
            if 'wo' not in self.kill:
                a(f"buffer_load_dwordx4 v{4+((i>>2)&1)}, s[44:47], s12 offen nt lds")
            a("s_add_u32 s12, s12, 5120")
        a.stamp(4)
        B0, A0, D0 = 64, 16, 32
        a("v_bfe_u32 v8, v0, 1, 3")
        a("v_lshlrev_b32 v8, 9, v8")
        a("v_lshl_add_u32 v8, v3, 5, v8")
        a("v_and_b32 v9, 1, v0")
        a("v_lshl_add_u32 v8, v9, 4, v8")
        a("v_lshlrev_b32 v9, 1, v3")
        a("v_xor_b32 v9, v9, v2")
        a("v_lshlrev_b32 v9, 9, v9")
        a("s_lshl_b32 s11, s6, 12")
        a(f"s_add_u32 s11, s11, {OP}")
        a("s_mul_i32 s13, s6, 2560")
        a("s_lshl_b32 s15, s8, 9")
        a("s_add_u32 s13, s13, s15")
        a("s_lshl_b32 s15, s4, 7")
        a("s_add_u32 s13, s13, s15")
        a(f"s_add_u32 s13, s13, {YP}")
        a("v_lshlrev_b32 v10, 2, v0")
        a("v_bfe_u32 v4, v0, 2, 2")
        a("v_lshl_add_u32 v5, v3, 4, v4")
        a("v_lshlrev_b32 v5, 8, v5")
        a("v_and_b32 v6, 3, v0")
        a("v_lshl_add_u32 v5, v6, 3, v5")
        a("v_bfe_u32 v6, v0, 2, 3")
        a("s_lshl_b32 s15, s4, 1")
        a("v_xor_b32 v6, s15, v6")
        a("v_xor_b32 v7, 1, v6")
        a("v_lshl_add_u32 v6, v6, 5, v5")
        a("v_lshl_add_u32 v7, v7, 5, v5")
        a("s_mov_b32 s67, 0xffffff00")
        a("v_mov_b32 v60, s69")

        def opass():
            a("buffer_load_dwordx3 v[12:14], v9, s[48:51], s11 offen offset:384 sc1")
            for j in range(3):
                a(f"buffer_load_dwordx4 v[{A0+4*j}:{A0+4*j+3}], v8, s[48:51], s11 offen offset:{128*j} sc1")
        a("s_waitcnt vmcnt(0)")
        if self.early0:
            opass()
        if 'poll' in self.kill:
            a("s_endpgm")
        a.arrive()
        a.stamp(5)
        a.lds_wait("w", L_WCNT, 4, 0)
        for j in range(3):
            for tb in range(2):
                for blk in range(2):
                    for half in range(2):
                        r = B0 + 4 * ((j * 2 + tb) * 2 + blk) + 2 * half
                        row = 64 * j + 8 * tb + 4 * half
                        a(f"ds_read_b64_tr_b16 v[{r}:{r+1}], v{6+blk} offset:{L_W+row*256}")
        if self.gate:
            a.lds_wait("g", L_DONE, self.gate, 1)
        a.stamp(6)
        if self.K0 >= 0:
            for r in [12, 13] + list(range(A0, A0 + 12)):
                a(f"v_mov_b32 v{r}, -1")
            a("v_not_b32 v14, s14")
            a("L_opoll:")
            a("s_mov_b64 s[16:17], -1")
            a("s_mov_b64 s[18:19], -1")
            a("L_op0:")
            a("s_mov_b64 exec, s[16:17]")
            a("s_cbranch_execz L_op1")
            a("buffer_load_dwordx3 v[12:14], v9, s[48:51], s11 offen offset:384 sc1")
            a("L_op1:")
            a("s_mov_b64 exec, s[18:19]")
            a("s_cbranch_execz L_op2")
            for j in range(3):
                a(f"buffer_load_dwordx4 v[{A0+4*j}:{A0+4*j+3}], v8, s[48:51], s11 offen offset:{128*j} sc1")
            a("L_op2:")
            a("s_mov_b64 exec, -1")
            if self.ps0:
                a(f"s_sleep {self.ps0}")
            a.guard("L_ogo")
            a(f"s_waitcnt vmcnt({self.K0})")
            a(f"v_max3_u32 v15, v{A0+3}, v{A0+7}, v{A0+11}")
            a("v_cmp_ne_u32 s[16:17], s14, v14")
            a("v_cmp_eq_u32 s[18:19], -1, v15")
            a("s_or_b64 s[20:21], s[16:17], s[18:19]")
            a("s_cbranch_scc1 L_op0")
        else:
            if self.early0:
                a("s_branch L_op2")
            elif self.ps0:
                a("s_branch L_op1")
            a("L_opoll:")
            if self.ps0:
                a(f"s_sleep {self.ps0}")
                a("L_op1:")
            opass()
            a("L_op2:")
            a.guard("L_ogo")
            a("s_waitcnt vmcnt(3)")
            a("v_cmp_ne_u32 vcc, s14, v14")
            a("s_cbranch_vccnz L_opoll")
        a("L_ogo:")
        a.stamp(7)
        a("s_waitcnt lgkmcnt(0)" if self.K0 >= 0 else "s_waitcnt vmcnt(3) lgkmcnt(0)")
        a(f"v_max_f32_dpp v15, v13, v13 quad_perm:[1,0,3,2] {FULL}")
        wsteps = {
            1: [f"v_max_f32_dpp v15, v15, v15 quad_perm:[2,3,0,1] {FULL}"],
            3: [f"v_max_f32_dpp v15, v15, v15 row_half_mirror {FULL}", "v_sub_f32 v11, v13, v15", "v_exp_f32 v11, v11"],
            4: ["v_mul_f32 v15, v12, v11"],
            5: [f"v_add_f32_dpp v15, v15, v15 quad_perm:[1,0,3,2] {FULL}"],
            7: [f"v_add_f32_dpp v15, v15, v15 quad_perm:[2,3,0,1] {FULL}"],
            9: [f"v_add_f32_dpp v15, v15, v15 row_half_mirror {FULL}", "v_rcp_f32 v15, v15"],
            10: ["v_mul_f32 v11, v11, v15"],
        }
        k = 0
        for j in range(3):
            a("s_nop 0" if self.K0 >= 0 else f"s_waitcnt vmcnt({2-j})")
            for tb in range(2):
                for blk in range(2):
                    d = D0 + 4 * (tb * 2 + blk)
                    b = B0 + 4 * ((j * 2 + tb) * 2 + blk)
                    c = "0" if j == 0 else f"v[{d}:{d+3}]"
                    a(f"v_mfma_f32_16x16x32_bf16 v[{d}:{d+3}], v[{A0+4*j}:{A0+4*j+3}], v[{b}:{b+3}], {c}")
                    k += 1
                    for s in wsteps.get(k, []):
                        a(s)
        a("s_nop 6")
        for blk in range(2):
            a(f"v_add_f32 v{48+blk}, v{D0+4*blk}, v{D0+8+4*blk+1}")
        for blk in range(2):
            a(f"v_add_f32 v{50+blk}, v{D0+4*blk+2}, v{D0+8+4*blk+3}")
        for blk in range(2):
            a(f"v_mul_f32_dpp v{48+blk}, v11, v{48+blk} row_newbcast:0 {FULL}")
        for blk in range(2):
            a(f"v_mul_f32_dpp v{50+blk}, v11, v{50+blk} row_newbcast:1 {FULL}")
        a("v_pk_add_f32 v[48:49], v[48:49], v[50:51]")
        a("s_nop 1")
        a("v_permlane16_swap_b32 v48, v49")
        a("v_add_f32 v48, v48, v49")
        a("v_mov_b32 v49, v48")
        a("s_nop 1")
        a("v_permlane32_swap_b32 v48, v49")
        a("v_add_f32 v48, v48, v49")
        a("v_cmp_u_f32 vcc, v48, v48")
        a("v_and_or_b32 v48, v48, s67, v60")
        a("s_cbranch_vccz L_ost")
        a("s_cmp_lt_i32 s57, 0")
        a("s_cbranch_scc0 L_opoll")
        a("L_ost:")
        a("s_mov_b32 exec_hi, 0")
        a("buffer_store_dword v48, v10, s[48:51], s13 offen sc1")
        a.stamp(8)
        a("s_cmp_eq_u32 s7, 7")
        a("s_cselect_b32 s15, s6, 99")
        a("s_cmp_eq_u32 s4, 0")
        a("s_cselect_b32 s15, s15, 99")
        a("s_cmp_lt_u32 s15, 20")
        a("s_cbranch_scc1 L_fin")
        a.stamps_out()
        a("s_endpgm")

        a("L_fin:")
        a("s_mov_b64 exec, -1")
        a("v_mul_u32_u24 v3, 2560, v1")
        a("v_lshl_add_u32 v3, v2, 4, v3")
        a("s_lshl_b32 s11, s6, 7")
        for i in range(4):
            a(f"s_add_u32 s{16+i}, s11, {YP + i*8*2560}")
        a("v_bfe_u32 v5, v0, 4, 2")
        a("v_lshl_add_u32 v5, v2, 2, v5")
        a("v_lshlrev_b32 v5, 1, v5")
        a("s_lshl_b32 s15, s6, 6")
        a("buffer_load_ushort v6, v5, s[40:43], s15 offen")
        a.srd(44, 34, 1280)
        for i in range(12):
            a(f"s_add_u32 s{20+i}, s11, {ZP + i*8*2560}")
        a(f"s_add_u32 s12, s11, {HP}")
        a("v_mov_b32 v7, v5")
        a("v_writelane_b32 v7, 64, 8")
        a("s_mov_b32 s13, 66")
        a("v_writelane_b32 v7, s13, 9")
        a("s_lshr_b32 s13, s14, 16")
        a(f"s_mov_b32 s57, {SPIN}")

        def gather(name, n, s0, sleep, K, R):
            if K >= 0:
                for i in range(n):
                    a(f"v_not_b32 v{R+4*i}, s14")
            if sleep:
                a(f"s_branch L_{name}1")
            a(f"L_{name}:")
            if sleep:
                a(f"s_sleep {sleep}")
                a(f"L_{name}1:")
            for i in range(n):
                a(f"buffer_load_dwordx4 v[{R+4*i}:{R+3+4*i}], v3, s[48:51], s{s0+i} offen sc1")

            def add(i):
                src = f"v[{R}:{R+1}]" if i == 1 else "v[8:9]"
                a(f"v_pk_add_f32 v[8:9], {src}, v[{R+4*i}:{R+1+4*i}]")
                src = f"v[{R+2}:{R+3}]" if i == 1 else "v[10:11]"
                a(f"v_pk_add_f32 v[10:11], {src}, v[{R+2+4*i}:{R+3+4*i}]")
            if K >= 0:
                a(f"s_waitcnt vmcnt({K})")
            for i in range(n):
                if K < 0:
                    a(f"s_waitcnt vmcnt({n-1-i})")
                if i == 0:
                    a(f"v_xor_b32 v12, s14, v{R}")
                    continue
                a(f"v_bitop3_b32 v12, v{R+4*i}, s14, v12 bitop3:0xbe")
                if K < 0:
                    add(i)
            a("v_and_b32 v12, 0xff, v12")
            a.guard(f"L_{name}g")
            a("v_cmp_ne_u32 vcc, 0, v12")
            a(f"s_cbranch_vccnz L_{name}")
            a(f"L_{name}g:")
            if K >= 0:
                for i in range(1, n):
                    add(i)
                a("s_nop 1")
            a("v_permlane32_swap_b32 v8, v10")
            a("v_permlane32_swap_b32 v9, v11")
            a("v_pk_add_f32 v[8:9], v[8:9], v[10:11]")
            a("s_nop 1")
            a("v_permlane16_swap_b32 v8, v9")
            a("v_add_f32 v8, v8, v9")
            a("s_nop 1")
            a(f"v_add_f32_dpp v8, v8, v8 row_ror:8 {FULL}")

        gather("yp", 4, 16, self.psy, self.Ky, 112)
        a.stamp(9, True)
        a("v_cvt_pk_bf16_f32 v8, 0, v8")
        a("v_lshlrev_b32 v6, 16, v6")
        a("v_add_f32 v6, v6, v8")
        a("v_cvt_pk_bf16_f32 v9, v6, 0")
        a("v_writelane_b32 v9, s14, 8")
        a("v_writelane_b32 v9, s13, 9")
        a("s_mov_b32 exec_lo, 0x00ff03ff")
        a("s_mov_b32 exec_hi, 0x00ff00ff")
        a("buffer_store_short v9, v7, s[48:51], s12 offen sc1")
        a("s_mov_b64 exec, -1")
        a("v_cvt_pk_bf16_f32 v6, 0, v6")
        a(f"s_mov_b32 s57, {SPIN}")
        gather("zp", 12, 20, self.psz, self.Kz, 128)
        a.stamp(10)
        a("v_cvt_pk_bf16_f32 v8, 0, v8")
        a("v_add_f32 v6, v6, v8")
        a("v_cvt_pk_bf16_f32 v6, v6, 0")
        a("s_mov_b32 exec_lo, 0x00ff00ff")
        a("s_mov_b32 exec_hi, 0x00ff00ff")
        a("buffer_store_short v6, v5, s[44:47], s15 offen")
        a("s_cmp_lg_u32 s6, 0")
        a("s_cbranch_scc1 L_fend")
        a("s_mov_b64 exec, 1")
        a("v_mov_b32 v7, s14")
        a(f"s_mov_b32 s15, {EP}")
        a("buffer_store_dword v7, off, s[48:51], s15")
        if self.hold:
            a("s_memrealtime s[98:99]")
            a("s_waitcnt lgkmcnt(0)")
            a("s_sub_u32 s98, s98, s96")
            a("v_mov_b32 v7, s98")
            a("v_mov_b32 v8, 4")
            a("global_store_dword v8, v7, s[36:37]")
        a("L_fend:")
        a.stamp(11, True)
        a.stamps_out(lite=True)
        a("s_endpgm")

    def ffn(self):
        a = self
        a("L_ffn:")
        M40 = "s_mov_b32 exec_hi, 0xff"
        MALL = "s_mov_b32 exec_hi, -1"
        DW, PW, B0, A0 = 128, 160, 64, 32
        a("s_mul_i32 s10, s5, 12")
        a("s_lshr_b32 s11, s6, 3")
        a("s_mul_i32 s11, s11, 3")
        a("s_add_u32 s10, s10, s11")
        a("s_add_u32 s10, s10, s7")
        a.srd(44, 28, 640 * 3072)
        a.srd(52, 30, 640 * 3072)
        a("s_mul_i32 s11, s10, 20480")
        a.srd(60, 32, 20480, "s11")
        a("v_lshrrev_b32 v3, 1, v0")
        a("v_mul_u32_u24 v3, 3072, v3")
        a("v_and_b32 v4, 1, v0")
        a("v_lshl_add_u32 v26, v4, 4, v3")
        a("s_mul_i32 s12, s4, 491520")
        a("s_lshl_b32 s11, s10, 5")
        a("s_add_u32 s12, s12, s11")
        a("s_mul_i32 s15, s4, 10240")
        a(f"s_add_u32 s15, s15, {L_W}")
        a("v_lshlrev_b32 v27, 3, v0")
        a("s_mul_i32 s9, s4, 320")
        a("v_and_b32 v13, 15, v0")
        a("v_lshrrev_b32 v3, 4, v0")
        a("v_lshlrev_b32 v28, 3, v13")
        a("v_lshl_add_u32 v28, v3, 8, v28")
        a("v_add_u32 v28, s15, v28")
        a("s_mul_i32 s11, s4, 272")
        a(f"s_add_u32 s11, s11, {L_RED}")
        a("v_lshl_add_u32 v12, v0, 4, s11")
        a("v_lshlrev_b32 v14, 4, v13")
        a("s_add_u32 s11, s11, 256")
        a(f"v_add_u32 v15, {L_DUM}, v27")
        a("v_writelane_b32 v15, s11, 63")
        a("v_lshlrev_b32 v5, 4, v3")
        a("v_lshlrev_b32 v6, 7, v1")
        a("v_lshl_add_u32 v6, v2, 3, v6")
        a("v_lshlrev_b32 v7, 7, v2")
        a("v_add_u32 v7, 64, v7")
        a("v_cmp_gt_u32 vcc, 40, v0")
        a("s_mul_i32 s11, s4, 640")
        a("s_mul_i32 s13, s10, 2560")
        a("v_cndmask_b32 v6, v7, v6, vcc")
        a("v_lshlrev_b32 v4, 4, v0")
        a("s_add_u32 s13, s13, s11")
        a(f"s_add_u32 s13, s13, {ZP}")
        a(f"s_add_u32 s11, s11, {HP}")
        a("s_mov_b32 s67, 0xffffff00")
        a("v_mov_b32 v60, s69")
        a("s_mov_b32 s16, 0")
        a("s_mov_b32 s17, 0x1f00")
        a("s_mov_b32 s18, 0x00010001")
        a("s_mov_b32 s19, 0x00010001")
        a("s_mov_b32 s20, -1")
        a("s_mov_b32 s21, 0x1fff")
        a("s_mov_b32 s24, 0x05040100")
        a("s_mov_b32 s25, 0x07060302")
        a("v_mov_b32 v8, 0x3f803f80")
        for r in range(A0, A0 + 20):
            a(f"v_mov_b32 v{r}, v8")

        def down():
            a(M40)
            for r in range(16):
                a(f"buffer_load_dwordx2 v[{DW+2*r}:{DW+2*r+1}], v27, s[60:63], s9 offen offset:{1280*(r%3)} {self.dpol}")
                if r % 3 == 2:
                    a("s_add_u32 s9, s9, 3840")
            a(MALL)

        def perms():
            for p in range(8):
                for c in range(4):
                    lo, hi = DW + 4 * p + (c >> 1), DW + 4 * p + 2 + (c >> 1)
                    a(f"v_perm_b32 v{PW+4*p+c}, v{hi}, v{lo}, s{24 + c % 2}")

        def trs(t0, t1):
            for i in range(2 * t0, 2 * t1):
                for half in range(2):
                    a(f"ds_read_b64_tr_b16 v[{B0+4*i+2*half}:{B0+4*i+2*half+1}], v28 offset:{1024*i+128*half}")

        GL = self.glate
        for t in range(6):
            if t == 5 - GL:
                a("s_waitcnt vmcnt(0)")
                trs(0, t)
                if self.gpre and GL:
                    a("s_and_b32 s8, s10, 3")
                    a(f"s_mul_i32 s8, s8, {8*3072 - 32}")
                    a("v_mul_u32_u24 v29, 3072, v1")
                    a("v_lshl_add_u32 v29, v2, 4, v29")
                    a("s_add_u32 s8, s8, s12")
                a.trigger("g", self.gcnt, self.gdone)
                if self.gpre and GL:
                    for k in range(GL):
                        for m in range(2):
                            a(f"buffer_load_dwordx4 v[{192+4*(2*k+m)}:{195+4*(2*k+m)}], v29, s[{44+8*m}:{47+8*m}], s8 offen")
                        a("s_add_u32 s8, s8, 98304")
                down()
                if self.gpre and GL:
                    a("s_waitcnt vmcnt(16)")
            if t == 5:
                break
            for m in range(2):
                a("s_mov_b32 m0, s15")
                a("s_add_u32 s15, s15, 1024")
                if 'gu' not in self.kill:
                    a(f"buffer_load_dwordx4 v26, s[{44+8*m}:{47+8*m}], s12 offen {self.gpol} lds")
                if t < 5 - GL:
                    a(f"s_waitcnt vmcnt({self.fpace})")
            a("s_add_u32 s12, s12, 98304")
        if 'poll' in self.kill:
            a("s_endpgm")
        a(f"s_waitcnt vmcnt({2*GL})")
        a.stamp(5)
        perms()
        for t in range(5 - GL, 5):
            a(f"s_waitcnt vmcnt({2*(4-t)})")
            trs(t, t + 1)
        a.stamp(4)
        if self.gate and self.gdone != 2:
            a.lds_wait("h", L_DONE, self.gate, 1)
        a.stamp(6)
        if self.psh:
            a("s_branch L_hp1")
        a("L_hpoll:")
        if self.psh:
            a(f"s_sleep {self.psh}")
            a("L_hp1:")
        a("s_mov_b64 exec, s[20:21]")
        a("buffer_load_dwordx2 v[24:25], v6, s[48:51], s11 offen sc1")
        a("s_mov_b64 exec, s[18:19]")
        for t in range(5):
            a(f"buffer_load_dwordx4 v[{A0+4*t}:{A0+4*t+3}], v5, s[48:51], s11 offen offset:{128*t} sc1")
        a("s_mov_b64 exec, -1")
        a("v_mov_b32 v30, 0")
        a("v_mov_b32 v31, 0")
        a.guard("L_hgo")
        a("s_waitcnt vmcnt(5)")
        a("v_cmp_ne_u32 vcc, s14, v24")
        a("s_and_b64 vcc, vcc, s[16:17]")
        a("s_cbranch_scc1 L_hpoll")
        a("L_hgo:")
        a.stamp(7)
        a("s_waitcnt vmcnt(5) lgkmcnt(0)")
        a(M40)
        a("v_dot2c_f32_bf16 v30, v24, v8")
        a("v_dot2c_f32_bf16 v31, v24, v24")
        a("v_dot2c_f32_bf16 v30, v25, v8")
        a("v_dot2c_f32_bf16 v31, v25, v25")
        a(MALL)
        k = 0
        for t in range(5):
            a(f"s_waitcnt vmcnt({4-t})")
            for m in range(2):
                c = "0" if t == 0 else f"v[{16+4*m}:{19+4*m}]"
                b = B0 + 4 * (2 * t + m)
                a(f"v_mfma_f32_16x16x32_bf16 v[{16+4*m}:{19+4*m}], v[{A0+4*t}:{A0+4*t+3}], v[{b}:{b+3}], {c}")
                if 1 <= k <= 6:
                    for r in (30, 31):
                        a(f"v_add_f32_dpp v{r}, v{r}, v{r} {self.RSTEPS[k-1]}")
                k += 1
        a("ds_write_b64 v15, v[30:31]")
        a("s_nop 5")
        a("v_cmp_u_f32 vcc, v16, v30")
        a("s_mov_b64 exec, 0xffff")
        a("ds_write2_b64 v12, v[16:17], v[20:21] offset1:1")
        a("s_mov_b64 exec, -1")
        a("s_cbranch_vccz L_hok")
        a("s_cmp_lt_i32 s57, 0")
        a("s_cbranch_scc0 L_hpoll")
        a("L_hok:")
        a("s_waitcnt lgkmcnt(0)")
        a("s_barrier")
        for w in range(4):
            a(f"ds_read_b64 v[{104+2*w}:{105+2*w}], v62 offset:{L_RED+272*w+256}")
        for w in range(4):
            a(f"ds_read_b128 v[{192+4*w}:{195+4*w}], v14 offset:{L_RED+272*w}")
        for i in range(4):
            a(f"v_mov_b32 v{112+i}, 0")
        a("s_waitcnt lgkmcnt(4)")
        a("v_pk_add_f32 v[104:105], v[104:105], v[106:107]")
        a("v_pk_add_f32 v[108:109], v[108:109], v[110:111]")
        a("v_pk_add_f32 v[104:105], v[104:105], v[108:109]")
        a("v_mul_f32 v104, 0x3acccccd, v104")
        a("v_mul_f32 v105, 0x3acccccd, v105")
        a("v_fma_f32 v105, -v104, v104, v105")
        a("v_maximum3_f32 v105, v105, 0, 0")
        a("v_add_f32 v105, 0x3727c5ac, v105")
        a("v_rcp_f32 v105, v105")
        a("s_waitcnt lgkmcnt(2)")
        a("v_pk_add_f32 v[192:193], v[192:193], v[196:197]")
        a("v_pk_add_f32 v[194:195], v[194:195], v[198:199]")
        a("s_waitcnt lgkmcnt(0)")
        a("v_pk_add_f32 v[200:201], v[200:201], v[204:205]")
        a("v_pk_add_f32 v[202:203], v[202:203], v[206:207]")
        a("v_pk_add_f32 v[192:193], v[192:193], v[200:201]")
        a("v_pk_add_f32 v[194:195], v[194:195], v[202:203]")
        a("v_fma_f32 v16, -v104, v193, v192")
        a("v_fma_f32 v17, -v104, v195, v194")
        a("v_maximum3_f32 v16, v16, 0, 0")
        a("v_mul_f32 v17, v17, v105")
        a("v_mul_f32 v16, v16, v17")
        a("s_nop 1")
        a(f"v_mov_b32_dpp v17, v16 quad_perm:[1,0,3,2] {FULL}")
        a("v_cvt_pk_bf16_f32 v16, v16, v17")
        a("s_nop 1")
        for p in range(8):
            for c in range(4):
                a(f"v_dot2c_f32_bf16_dpp v{112+c}, v16, v{PW+4*p+c} row_newbcast:{2*p} {FULL}")
        a(M40)
        a("v_and_or_b32 v112, v112, s67, v60")
        a("s_nop 0")
        a("buffer_store_dwordx4 v[112:115], v4, s[48:51], s13 offen sc1")
        a.stamp(8)
        a.stamps_out()
        a("s_endpgm")

    def text(self):
        self.gen()
        out = [HEADER.rstrip("\n"),
               f"; @launch grid=(256,1,1) block=(512,1,1) lds={LDS_BYTES}",
               '.amdgcn_target "amdgcn-amd-amdhsa--gfx950"', ".text", f".globl {NAME}_kernel", ".p2align 8",
               f".type {NAME}_kernel,@function"]
        out += self.L
        out += ['.section .rodata,"a"', ".p2align 6", f".amdhsa_kernel {NAME}_kernel",
                "  .amdhsa_next_free_vgpr 256", "  .amdhsa_next_free_sgpr 102", "  .amdhsa_accum_offset 256",
                "  .amdhsa_group_segment_fixed_size 0", "  .amdhsa_kernarg_size 96", "  .amdhsa_user_sgpr_count 2",
                "  .amdhsa_user_sgpr_kernarg_segment_ptr 1", "  .amdhsa_system_sgpr_workgroup_id_x 1",
                "  .amdhsa_float_denorm_mode_32 3", ".end_amdhsa_kernel"]
        return "\n".join(out) + "\n"


def gen(**kw):
    return G(**kw).text()


if __name__ == "__main__":
    kw = eval("dict(" + (sys.argv[2] if len(sys.argv) > 2 else "") + ")")
    open(sys.argv[1], "w").write(gen(**kw))
```
